```python
import torch

def _softmax(x, axis=-1):
    return torch.softmax(x, dim=axis)

def _gelu(x):
    return torch.nn.functional.gelu(x, approximate='tanh')

def _silu(x):
    return torch.nn.functional.silu(x)

def _sigmoid(x):
    return torch.sigmoid(x)

def _layernorm(x, axis=-1, eps=1e-05):
    m = x.mean(dim=axis, keepdim=True)
    v = x.var(dim=axis, keepdim=True, unbiased=False)
    return (x - m) / torch.sqrt(v + eps)

def _scatter_add(tgt, idx, src, axis=0):
    return tgt.clone().index_add_(axis, idx, src)

def _segment_sum(src, seg, n):
    out = torch.zeros((n,) + src.shape[1:], dtype=src.dtype)
    return out.index_add_(0, seg, src)

def _pad(x, pw):
    flat = tuple((v for pair in reversed(pw) for v in pair))
    return torch.nn.functional.pad(x, flat)
kernel_name = 'adaLN_cond__ssm_conv_h3__dense_activation_relu__prompt'

def setup_inputs():

    _w = lambda a: (lambda t: t.to(torch.bfloat16) if t.is_floating_point() else t)(torch.as_tensor(a))

    def _A_setup():
        B, S, D = (1, 2048, 512)
        ks = 4
        return {'q': _w((lambda *s: torch.randn(*s, dtype=torch.bfloat16) * 0.05)(B, S, D)), 'k': _w((lambda *s: torch.randn(*s, dtype=torch.bfloat16) * 0.8)(B, S, D)), 'v': _w((lambda *s: torch.randn(*s, dtype=torch.bfloat16) * 0.8)(B, S, D)), 'shift_k': _w((lambda *s: torch.randn(*s, dtype=torch.bfloat16) * 0.8)(D, ks) * 0.5), 'ssm_k': _w((lambda *s: torch.randn(*s, dtype=torch.bfloat16) * 0.8)(D, S) * (1.0 / S ** 0.5)), 'ssm_D': _w((lambda *s: torch.randn(*s, dtype=torch.bfloat16) * 0.8)(D))}
    _A_in = _A_setup()

    def _B_setup():
        B, S, D, Dff = (1, 2048, 512, 1792)
        return {'x': _w((lambda *s: torch.randn(*s, dtype=torch.bfloat16) * 0.05)(B, S, D)), 'w1': _w((lambda *s: torch.randn(*s, dtype=torch.bfloat16) * 0.05)(D, Dff)), 'w2': _w((lambda *s: torch.randn(*s, dtype=torch.bfloat16) * 0.05)(Dff, D))}
    _B_in = _B_setup()
    return {'A_q': _A_in['q'], 'A_k': _A_in['k'], 'A_v': _A_in['v'], 'A_shift_k': _A_in['shift_k'], 'A_ssm_k': _A_in['ssm_k'], 'A_ssm_D': _A_in['ssm_D'], 'B_x': _B_in['x'], 'B_w1': _B_in['w1'], 'B_w2': _B_in['w2'], 'c': _w((lambda *s: torch.randn(*s, dtype=torch.bfloat16) * 0.2)(1, 512) * 8.0), 'w_mod': _w((lambda *s: torch.randn(*s, dtype=torch.bfloat16) * 0.2)(512, 6 * 512) * 512 ** (-0.5) * 8.0)}

def reference(A_q, A_k, A_v, A_shift_k, A_ssm_k, A_ssm_D, B_x, B_w1, B_w2, c, w_mod):

    def _A_ref(q, k, v, shift_k, ssm_k, ssm_D):
        B, S, D = q.shape
        ks = shift_k.shape[-1]
        k_pad = _pad(k, ((0, 0), (ks - 1, 0), (0, 0)))
        k_shift = torch.zeros_like(k)
        for t in range(ks):
            k_shift = k_shift + k_pad[:, t:t + S, :] * shift_k[:, ks - 1 - t][None, None, :]
        kv = k_shift * v
        L = 2 * S
        kv_pad = _pad(kv, ((0, 0), (0, S), (0, 0)))
        kf_pad = _pad(ssm_k, ((0, 0), (0, S)))
        kv_f = (lambda x, axes=(-2, -1): torch.fft.rfft2(x.float(), dim=axes))(kv_pad[:, None, :, :], axes=(1, 2))
        kf_f = (lambda x, axes=(-2, -1): torch.fft.rfft2(x.float(), dim=axes))(kf_pad[:, None, :], axes=(1, 2))
        kf_f = (lambda x, *d: x.permute(*d))(kf_f, 1, 2, 0)
        y_f = kv_f * kf_f[None, :, :, :]
        y = (lambda x, s, axes=(-2, -1): torch.fft.irfft2(x, s=s, dim=axes).to(torch.bfloat16))(y_f, (1, L), axes=(1, 2))[:, 0, :S, :]
        y = y + kv * ssm_D[None, None, :]
        return q * y

    def _B_ref(x, w1, w2):
        h = torch.einsum('bsd,df->bsf', x, w1)
        zero = torch.zeros_like(h)
        h = torch.maximum(h, zero)
        return torch.einsum('bsf,fd->bsd', h, w2)
    x = A_q
    mod = (_silu(c) @ w_mod).reshape(c.shape[0], 6, 1, -1)
    sa, ca, ga, sb, cb, gb = (mod[:, 0].clone(), mod[:, 1].clone(), mod[:, 2].clone(), mod[:, 3].clone(), mod[:, 4].clone(), mod[:, 5].clone())
    h = _layernorm(x, axis=-1) * (1 + ca) + sa
    x = x + ga * _A_ref(h, A_k, A_v, A_shift_k, A_ssm_k, A_ssm_D)
    h = _layernorm(x, axis=-1) * (1 + cb) + sb
    x = x + gb * _B_ref(h, B_w1, B_w2)
    return x
```

```python
import sys
NAME = "adaLN_cond__ssm_conv_h3__dense_activation_relu__prompt"

A_Q, A_K, A_V, A_SHK, A_SSMK, A_SSMD, A_BX, A_W1, A_W2, A_C, A_WMOD, A_OUT, A_DBG, A_WS = [8*i for i in range(14)]

WS_KVT = 0x000000
WS_QT  = 0x200000
WS_ST1 = 0x400000
WS_MOD = 0x404000
WS_UT  = 0x408000
WS_X1T = 0x500000
WS_X1R = 0x700000
WS_W1F = 0x900000
WS_W2F = 0xB00000
WS_HID = 0xD00000

class K:
    def __init__(self):
        self.l = []
    def __call__(self, s=""):
        for x in s.split("\n"):
            x = x.strip()
            if not x: continue
            if x.endswith(":") or x.startswith(";") or x.startswith("."):
                self.l.append(x)
            else:
                self.l.append("    " + x)
    def text(self): return "\n".join(self.l) + "\n"
    def srd(self, d, p, size, off=0):
        if off:
            self(f"s_add_u32 s{d}, s{p}, {off:#x}")
            self(f"s_addc_u32 s{d+1}, s{p+1}, 0")
        else:
            self(f"s_mov_b32 s{d}, s{p}")
            self(f"s_mov_b32 s{d+1}, s{p+1}")
        self(f"s_mov_b32 s{d+2}, {size:#x}")
        self(f"s_mov_b32 s{d+3}, 0x20000")

def kd(name, vgpr, sgpr=96, accum=None):
    if accum is None: accum = (vgpr + 3)//4*4
    return f"""
.section .rodata,"a"
.p2align 6
.amdhsa_kernel {name}
  .amdhsa_next_free_vgpr {vgpr}
  .amdhsa_next_free_sgpr {sgpr}
  .amdhsa_accum_offset {accum}
  .amdhsa_group_segment_fixed_size 0
  .amdhsa_kernarg_size 112
  .amdhsa_user_sgpr_count 2
  .amdhsa_user_sgpr_kernarg_segment_ptr 1
  .amdhsa_system_sgpr_workgroup_id_x 1
  .amdhsa_float_denorm_mode_32 3
  .amdhsa_float_denorm_mode_16_64 3
.end_amdhsa_kernel
.text
"""

def header(k, name):
    k(f".globl {name}")
    k(f".p2align 8")
    k(f".type {name},@function")
    k(f"{name}:")

def round_bf16(k, dst, src, tmp=None):
    k(f"v_cvt_pk_bf16_f32 {dst}, {src}, {src}")
    k(f"v_and_b32 {dst}, 0xffff0000, {dst}")

N_MOD, N_STAT, N_TILE = 96, 64, 256
def gen_k0(name):
    k = K()
    header(k, name)
    k(f"s_cmp_ge_u32 s2, {N_MOD+N_STAT+N_TILE}")
    k("s_cbranch_scc1 K0_END")
    k(f"s_cmp_lt_u32 s2, {N_MOD}")
    k("s_cbranch_scc1 K0_MOD")
    k(f"s_cmp_lt_u32 s2, {N_MOD+N_STAT}")
    k("s_cbranch_scc1 K0_STAT")
    k(f"s_load_dwordx4 s[4:7], s[0:1], {A_Q}")
    k(f"s_load_dwordx4 s[8:11], s[0:1], {A_V}")
    k(f"s_load_dwordx2 s[12:13], s[0:1], {A_WS}")
    k(f"s_sub_u32 s3, s2, {N_MOD+N_STAT}")
    k("s_and_b32 s14, s3, 7")
    k("s_lshr_b32 s15, s3, 3")
    k("v_and_b32 v1, 31, v0")
    k("v_lshrrev_b32 v2, 5, v0")
    k("s_lshl_b32 s16, s15, 6")
    k("v_lshlrev_b32 v3, 3, v2")
    k("v_add_u32 v3, s16, v3")
    k("s_lshl_b32 s17, s14, 6")
    k("v_lshlrev_b32 v4, 1, v1")
    k("v_add_u32 v4, s17, v4")
    k("v_lshlrev_b32 v5, 10, v3")
    k("v_lshl_add_u32 v5, v4, 1, v5")
    k("v_subrev_u32 v6, 3072, v5")
    k("v_lshlrev_b32 v7, 3, v4")
    k("s_movk_i32 s18, 0x1000")
    k("s_waitcnt lgkmcnt(0)")
    k.srd(20, 4, 0x200000)
    k.srd(24, 6, 0x200000)
    k.srd(28, 8, 0x200000)
    k.srd(32, 10, 4096)
    k.srd(36, 12, 0x200000, WS_KVT)
    k.srd(40, 12, 0x200000, WS_QT)
    k("buffer_load_dwordx4 v[40:43], v7, s[32:35], 0 offen")
    for i in range(3):
        k(f"buffer_load_dword v{10+i}, v6, s[24:27], 0 offen offset:{i*1024}")
    for i in range(8):
        so = "0" if i < 4 else "s18"
        k(f"buffer_load_dword v{13+i}, v5, s[24:27], {so} offen offset:{(i%4)*1024}")
    for i in range(8):
        so = "0" if i < 4 else "s18"
        k(f"buffer_load_dword v{22+i}, v5, s[28:31], {so} offen offset:{(i%4)*1024}")
    for i in range(8):
        so = "0" if i < 4 else "s18"
        k(f"buffer_load_dword v{32+i}, v5, s[20:23], {so} offen offset:{(i%4)*1024}")
    k("v_lshlrev_b32 v8, 12, v4")
    k("v_lshlrev_b32 v9, 1, v3")
    k("v_add_u32 v45, v8, v9")
    k("v_sub_u32 v44, v8, v9")
    k("v_add_u32 v44, 4080, v44")
    k("s_mov_b32 s19, 0x05040100")
    k("s_mov_b32 s44, 0x07060302")
    k("s_waitcnt vmcnt(8)")
    k("v_lshlrev_b32 v46, 16, v40")
    k("v_and_b32 v47, 0xffff0000, v40")
    k("v_lshlrev_b32 v48, 16, v41")
    k("v_and_b32 v49, 0xffff0000, v41")
    k("v_lshlrev_b32 v50, 16, v42")
    k("v_and_b32 v51, 0xffff0000, v42")
    k("v_lshlrev_b32 v52, 16, v43")
    k("v_and_b32 v53, 0xffff0000, v43")
    for e in range(2):
        w = 46 + 4*e
        for i in range(11):
            if e == 0: k(f"v_lshlrev_b32 v{60+i}, 16, v{10+i}")
            else:      k(f"v_and_b32 v{60+i}, 0xffff0000, v{10+i}")
        for r in range(8):
            k(f"v_mul_f32 v{72+r}, v{63+r}, v{w}")
        for j in range(1,4):
            for r in range(8):
                k(f"v_fmac_f32 v{72+r}, v{63+r-j}, v{w+j}")
        for r in range(8):
            if e == 0: k(f"v_lshlrev_b32 v{60+r}, 16, v{22+r}")
            else:      k(f"v_and_b32 v{60+r}, 0xffff0000, v{22+r}")
        for r in range(8):
            k(f"v_mul_f32 v{72+r}, v{72+r}, v{60+r}")
        base = 80 + 4*e
        for i in range(4):
            k(f"v_cvt_pk_bf16_f32 v{base+i}, v{72+7-2*i}, v{72+6-2*i}")
    k("buffer_store_dwordx4 v[80:83], v44, s[36:39], 0 offen")
    k("v_add_u32 v44, 0x1000, v44")
    k("buffer_store_dwordx4 v[84:87], v44, s[36:39], 0 offen")
    k("s_waitcnt vmcnt(2)")
    for i in range(4):
        k(f"v_perm_b32 v{88+i}, v{33+2*i}, v{32+2*i}, s19")
    for i in range(4):
        k(f"v_perm_b32 v{92+i}, v{33+2*i}, v{32+2*i}, s44")
    k("buffer_store_dwordx4 v[88:91], v45, s[40:43], 0 offen")
    k("v_add_u32 v45, 0x1000, v45")
    k("buffer_store_dwordx4 v[92:95], v45, s[40:43], 0 offen")
    k("s_endpgm")

    k("K0_STAT:")
    k(f"s_load_dwordx2 s[4:5], s[0:1], {A_Q}")
    k(f"s_load_dwordx2 s[12:13], s[0:1], {A_WS}")
    k(f"s_sub_u32 s3, s2, {N_MOD}")
    k("s_lshl_b32 s3, s3, 5")
    k("v_lshrrev_b32 v1, 3, v0")
    k("v_add_u32 v1, s3, v1")
    k("v_and_b32 v2, 7, v0")
    k("v_lshlrev_b32 v3, 10, v1")
    k("v_lshl_add_u32 v3, v2, 4, v3")
    k("s_waitcnt lgkmcnt(0)")
    k.srd(20, 4, 0x200000)
    k.srd(24, 12, 2048*8, WS_ST1)
    for i in range(8):
        k(f"buffer_load_dwordx4 v[{8+4*i}:{11+4*i}], v3, s[20:23], 0 offen offset:{i*128}")
    k("s_mov_b32 s16, 0x3f803f80")
    k("v_mov_b32 v40, 0")
    k("v_mov_b32 v41, 0")
    k("v_mov_b32 v42, 0")
    k("v_mov_b32 v43, 0")
    for i in range(8):
        k(f"s_waitcnt vmcnt({7-i})")
        for j in range(4):
            r = 8+4*i+j
            k(f"v_dot2_f32_bf16 v{40+(j&1)}, v{r}, s16, v{40+(j&1)}")
            k(f"v_dot2_f32_bf16 v{42+(j&1)}, v{r}, v{r}, v{42+(j&1)}")
    k("s_nop 2")
    k("v_add_f32 v40, v40, v41")
    k("v_add_f32 v42, v42, v43")
    for dpp in ["quad_perm:[1,0,3,2]", "quad_perm:[2,3,0,1]", "row_half_mirror"]:
        k("s_nop 1")
        k(f"v_add_f32_dpp v40, v40, v40 {dpp} row_mask:0xf bank_mask:0xf")
        k(f"v_add_f32_dpp v42, v42, v42 {dpp} row_mask:0xf bank_mask:0xf")
    ln_finish(k, "v40", "v42", "v44", "v45", ["v46", "v47"])
    k("v_mul_f32 v45, v45, v44")
    k("v_sub_f32 v45, 0, v45")
    k("v_lshlrev_b32 v4, 3, v1")
    k("v_cmp_eq_u32 vcc, 0, v2")
    k("s_and_saveexec_b64 s[30:31], vcc")
    k("s_cbranch_execz K0_END")
    k("buffer_store_dwordx2 v[44:45], v4, s[24:27], 0 offen")
    k("s_endpgm")

    k("K0_MOD:")
    k(f"s_load_dwordx4 s[4:7], s[0:1], {A_C}")
    k(f"s_load_dwordx2 s[12:13], s[0:1], {A_WS}")
    k("v_and_b32 v1, 3, v0")
    k("v_lshrrev_b32 v2, 2, v0")
    k("v_mul_u32_u24 v3, 49152, v2")
    k("v_lshl_add_u32 v3, v1, 4, v3")
    k("s_lshl_b32 s3, s2, 6")
    k("v_add_u32 v3, s3, v3")
    k("v_lshlrev_b32 v4, 4, v2")
    for i in range(1, 8):
        k(f"s_mov_b32 s{40+i}, {6144*i}")
    k("s_waitcnt lgkmcnt(0)")
    k.srd(16, 4, 1024)
    k.srd(20, 6, 512*6144)
    k.srd(24, 12, 3072*4, WS_MOD)
    k("buffer_load_dwordx4 v[8:11], v4, s[16:19], 0 offen")
    for i in range(8):
        so = "0" if i == 0 else f"s{40+i}"
        k(f"buffer_load_dwordx4 v[{12+4*i}:{15+4*i}], v3, s[20:23], {so} offen")
    k("s_waitcnt vmcnt(8)")
    for i in range(4):
        k(f"v_lshlrev_b32 v{50+2*i}, 16, v{8+i}")
        k(f"v_and_b32 v{51+2*i}, 0xffff0000, v{8+i}")
    k("s_mov_b32 s30, 0xbfb8aa3b")
    for i in range(8): k(f"v_mul_f32 v{60+i}, s30, v{50+i}")
    for i in range(8): k(f"v_exp_f32 v{60+i}, v{60+i}")
    k("s_nop 0")
    for i in range(8): k(f"v_add_f32 v{60+i}, 1.0, v{60+i}")
    for i in range(8): k(f"v_rcp_f32 v{60+i}, v{60+i}")
    k("s_nop 0")
    for i in range(8): k(f"v_mul_f32 v{60+i}, v{50+i}, v{60+i}")
    for i in range(8): k(f"v_cvt_pk_bf16_f32 v{70+i}, v{60+i}, v{60+i}")
    for i in range(8): k(f"v_and_b32 v{60+i}, 0xffff0000, v{70+i}")
    for i in range(8): k(f"v_and_b32 v{70+i}, 0xffff, v{70+i}")
    for c in range(8): k(f"v_mov_b32 v{80+c}, 0")
    for i in range(8):
        k(f"s_waitcnt vmcnt({7-i})")
        for j in range(4):
            k(f"v_dot2_f32_bf16 v{80+2*j}, v{12+4*i+j}, v{70+i}, v{80+2*j}")
            k(f"v_dot2_f32_bf16 v{81+2*j}, v{12+4*i+j}, v{60+i}, v{81+2*j}")
    k("v_lshlrev_b32 v5, 7, v2")
    k("v_lshl_add_u32 v5, v1, 5, v5")
    k("s_nop 2")
    k("ds_write_b128 v5, v[80:83]")
    k("ds_write_b128 v5, v[84:87] offset:16")
    k("s_waitcnt lgkmcnt(0)")
    k("s_barrier")
    k("v_cmp_gt_u32 vcc, 64, v0")
    k("s_and_saveexec_b64 s[30:31], vcc")
    k("s_cbranch_execz K0_END")
    k("v_and_b32 v1, 31, v0")
    k("v_lshrrev_b32 v2, 5, v0")
    k("v_lshlrev_b32 v5, 12, v2")
    k("v_lshl_add_u32 v5, v1, 2, v5")
    for i in range(32):
        k(f"ds_read_b32 v{8+i}, v5 offset:{i*128}")
        if i == 14: k("s_waitcnt lgkmcnt(0)")
        if i == 29: k("s_waitcnt lgkmcnt(0)")
    k("s_waitcnt lgkmcnt(0)")
    for st in [16, 8, 4, 2, 1]:
        for i in range(st):
            k(f"v_add_f32 v{8+i}, v{8+i}, v{8+i+st}")
    k("v_mov_b32 v9, v8")
    k("s_nop 1")
    k("v_permlane32_swap_b32 v8, v9")
    k("s_nop 1")
    k("v_add_f32 v8, v8, v9")
    round_bf16(k, "v8", "v8")
    k("s_lshr_b32 s3, s2, 4")
    k("s_cmp_eq_u32 s3, 1")
    k("s_cbranch_scc1 K0_MOD_P1")
    k("s_cmp_eq_u32 s3, 4")
    k("s_cbranch_scc0 K0_MOD_ST")
    k("K0_MOD_P1:")
    k("v_add_f32 v8, 1.0, v8")
    round_bf16(k, "v8", "v8")
    k("K0_MOD_ST:")
    k("s_lshl_b32 s3, s2, 7")
    k("v_lshlrev_b32 v5, 2, v1")
    k("v_add_u32 v5, s3, v5")
    k("v_cmp_gt_u32 vcc, 32, v0")
    k("s_and_saveexec_b64 s[30:31], vcc")
    k("s_cbranch_execz K0_END")
    k("buffer_store_dword v8, v5, s[24:27], 0 offen")
    k("K0_END:")
    k("s_endpgm")
    return k.text() + kd(name, 96)

def ln_finish(k, s1, s2, rstd, mean, tmp):
    t0, t1 = tmp
    k(f"v_mul_f32 {mean}, 0x3b000000, {s1}")
    k(f"v_mul_f32 {t0}, 0x3b000000, {s2}")
    k(f"v_fma_f32 {t0}, -{mean}, {mean}, {t0}")
    k(f"v_max_f32 {t0}, 0, {t0}")
    round_bf16(k, t0, t0)
    k(f"v_add_f32 {t0}, 0x3727c5ac, {t0}")
    round_bf16(k, t0, t0)
    k(f"v_sqrt_f32 {t0}, {t0}")
    k("s_nop 0")
    round_bf16(k, t0, t0)
    k(f"v_rcp_f32 {rstd}, {t0}")
    round_bf16(k, mean, mean)

XR_BYTES = 4608
KC_STRIDE = 4160
KC_BYTES = 4*KC_STRIDE
CH_BYTES = XR_BYTES + KC_BYTES
RED_OFF = 2*CH_BYTES
K1_LDS = RED_OFF + 16384
def gen_k1(name):
    k = K()
    header(k, name)
    k("s_cmp_ge_u32 s2, 368")
    k("s_cbranch_scc1 K1_END")
    k("s_cmp_ge_u32 s2, 312")
    k("s_cbranch_scc1 K1_W2")
    k("s_cmp_ge_u32 s2, 256")
    k("s_cbranch_scc1 K1_W1")
    k(f"s_load_dwordx4 s[4:7], s[0:1], {A_SSMK}")
    k(f"s_load_dwordx2 s[8:9], s[0:1], {A_WS}")
    k("v_lshrrev_b32 v1, 6, v0")
    k("v_and_b32 v0, 63, v0")
    k("s_nop 0")
    k("v_readfirstlane_b32 s10, v1")
    k("s_nop 3")
    k("s_lshr_b32 s11, s10, 1")
    k("s_and_b32 s12, s10, 1")
    k("s_lshl_b32 s13, s2, 1")
    k("s_add_u32 s13, s13, s11")
    k("s_lshl_b32 s14, s13, 12")
    k(f"s_mul_i32 s15, s11, {CH_BYTES}")
    k("s_waitcnt lgkmcnt(0)")
    k("s_add_u32 s16, s4, s14")
    k("s_addc_u32 s17, s5, 0")
    k("s_load_dwordx2 s[18:19], s[16:17], 0")
    k("s_lshr_b32 s20, s13, 1")
    k("s_lshl_b32 s20, s20, 2")
    k("s_load_dword s21, s[6:7], s20")
    k(f"s_add_u32 s22, s8, {WS_MOD:#x}")
    k("s_addc_u32 s23, s9, 0")
    k("s_lshl_b32 s20, s13, 2")
    k("s_add_u32 s22, s22, s20")
    k("s_addc_u32 s23, s23, 0")
    k("s_load_dword s24, s[22:23], 0")
    k("s_load_dword s25, s[22:23], 2048")
    k("s_load_dword s26, s[22:23], 4096")
    k.srd(28, 4, 0x200000)
    k.srd(32, 8, 0x200000, WS_KVT)
    k.srd(36, 8, 0x200000, WS_QT)
    k.srd(40, 8, 2048*8, WS_ST1)
    k.srd(44, 8, 0x200000, WS_X1T)
    k("v_lshlrev_b32 v2, 4, v0")
    k("s_lshl_b32 s48, s12, 11")
    k("s_add_u32 s49, s14, s48")
    k("s_add_u32 s50, s15, s48")
    k("s_mov_b32 m0, s50")
    k("s_nop 0")
    k("buffer_load_dwordx4 v2, s[32:35], s49 offen lds")
    k("buffer_load_dwordx4 v2, s[32:35], s49 offen offset:1024 lds")
    for ee in range(2):
        k(f"s_lshl_b32 s48, s12, 2")
        k(f"s_add_u32 s49, s14, s48")
        k(f"s_add_u32 s49, s49, {2+2*ee}")
        k(f"s_mul_i32 s50, s12, {2*KC_STRIDE}")
        k(f"s_add_u32 s50, s50, s15")
        k(f"s_add_u32 s50, s50, {XR_BYTES + ee*KC_STRIDE + 32}")
        k("s_mov_b32 m0, s50")
        k("s_nop 0")
        for c in range(4):
            k(f"buffer_load_dwordx4 v2, s[28:31], s49 offen offset:{c*1024} lds")
    k("v_and_b32 v3, 15, v0")
    k("v_lshrrev_b32 v4, 4, v0")
    k("v_lshlrev_b32 v5, 4, v3")
    k("v_lshl_add_u32 v5, v4, 2, v5")
    k("s_lshl_b32 s48, s12, 10")
    k("v_add_u32 v5, s48, v5")
    k("v_lshlrev_b32 v6, 1, v5")
    k("v_lshlrev_b32 v7, 3, v5")
    QV, SV = 200, 208
    for i in range(4):
        k(f"buffer_load_dwordx2 v[{QV+2*i}:{QV+2*i+1}], v6, s[36:39], s14 offen offset:{i*512}")
    for i in range(4):
        k(f"buffer_load_dwordx4 v[{SV+8*i}:{SV+8*i+3}], v7, s[40:43], 0 offen offset:{(i%2)*2048}" if i < 2 else
          f"buffer_load_dwordx4 v[{SV+8*i}:{SV+8*i+3}], v7, s[40:43], s51 offen offset:{(i%2)*2048}")
        k(f"buffer_load_dwordx4 v[{SV+8*i+4}:{SV+8*i+7}], v7, s[40:43], 0 offen offset:{(i%2)*2048+16}" if i < 2 else
          f"buffer_load_dwordx4 v[{SV+8*i+4}:{SV+8*i+7}], v7, s[40:43], s51 offen offset:{(i%2)*2048+16}")
        if i == 1: k("s_movk_i32 s51, 0x1000")
    k("v_mov_b32 v8, 0")
    k("v_mov_b32 v9, 0")
    k("v_mov_b32 v10, 0")
    k("v_mov_b32 v11, 0")
    k("v_lshlrev_b32 v12, 3, v0")
    k("s_add_u32 s48, s15, 4096")
    k("v_add_u32 v12, s48, v12")
    k("ds_write_b64 v12, v[8:9]")
    k("s_waitcnt lgkmcnt(0)")
    k("s_lshl_b32 s52, s18, 16")
    k("s_lshr_b32 s53, s18, 16")
    k("s_lshl_b32 s54, s19, 16")
    k("s_or_b32 s53, s53, s54")
    k("s_cmp_eq_u32 s12, 0")
    k("s_cselect_b32 s55, 0, s52")
    k("s_cselect_b32 s56, s52, s53")
    k("s_cselect_b32 s57, 0, s18")
    k("s_cselect_b32 s58, s18, s19")
    k("v_writelane_b32 v10, s55, 1")
    k("v_writelane_b32 v11, s56, 1")
    k("v_writelane_b32 v10, s57, 3")
    k("v_writelane_b32 v11, s58, 3")
    k("v_lshrrev_b32 v12, 1, v0")
    k(f"v_mul_u32_u24 v12, {KC_STRIDE}, v12")
    k("v_and_b32 v13, 1, v0")
    k("v_lshl_add_u32 v12, v13, 4, v12")
    k(f"s_mul_i32 s50, s12, {2*KC_STRIDE}")
    k("s_add_u32 s50, s50, s15")
    k(f"s_add_u32 s50, s50, {XR_BYTES}")
    k("v_add_u32 v12, s50, v12")
    k("s_mov_b64 s[60:61], exec")
    k("s_mov_b64 exec, 0xf")
    k("ds_write_b128 v12, v[8:11]")
    k("s_mov_b64 exec, s[60:61]")
    k("v_bfe_u32 v14, v0, 2, 2")
    k(f"v_mul_u32_u24 v14, {KC_STRIDE}, v14")
    k("v_and_b32 v15, 3, v0")
    k("v_lshl_add_u32 v14, v15, 3, v14")
    k("v_lshl_add_u32 v14, v4, 4, v14")
    k("s_lshl_b32 s48, s12, 8")
    k("s_add_u32 s48, s48, s15")
    k(f"s_add_u32 s49, s48, {XR_BYTES}")
    k("v_add_u32 v14, s49, v14")
    k("v_lshlrev_b32 v15, 4, v4")
    k("v_lshlrev_b32 v16, 5, v3")
    k("v_sub_u32 v15, v15, v16")
    k("s_add_u32 s49, s48, 480")
    k("v_add_u32 v15, s49, v15")
    ACC = 20
    FA = [64, 128]
    FB = [96, 160]
    for i in range(32): k(f"v_mov_b32 v{ACC+i}, 0")
    k("s_waitcnt vmcnt(12)")
    k("s_waitcnt lgkmcnt(0)")
    k("s_barrier")
    def loads(ph, st):
        out = []
        for tt in range(8):
            c = tt
            out.append(f"ds_read_b128 v[{FB[st]+4*c}:{FB[st]+4*c+3}], v15 offset:{3584-512*c+64*ph}")
            out.append(f"ds_read_b64_tr_b16 v[{FA[st]+4*tt}:{FA[st]+4*tt+1}], v14 offset:{64*ph+512*tt}")
            out.append(f"ds_read_b64_tr_b16 v[{FA[st]+4*tt+2}:{FA[st]+4*tt+3}], v14 offset:{64*ph+512*tt+8}")
        return out
    def mfmas(st):
        out = []
        pairs = [(tt, c) for tt in range(8) for c in range(8-tt)]
        pairs.sort(key=lambda p: (p[0], p[1]))
        for tt, c in pairs:
            ct = tt + c
            out.append(f"v_mfma_f32_16x16x32_bf16 v[{ACC+4*ct}:{ACC+4*ct+3}], v[{FA[st]+4*tt}:{FA[st]+4*tt+3}], v[{FB[st]+4*c}:{FB[st]+4*c+3}], v[{ACC+4*ct}:{ACC+4*ct+3}]")
        return out
    for x in loads(0, 0): k(x)
    for ph in range(4):
        st = ph % 2
        k("s_waitcnt lgkmcnt(0)")
        ms = mfmas(st)
        ls = loads(ph+1, 1-st) if ph < 3 else []
        li = 0
        for i, m in enumerate(ms):
            k(m)
            if li < len(ls) and i < 30:
                k(ls[li]); li += 1
        while li < len(ls):
            k(ls[li]); li += 1
    k("s_lshl_b32 s48, s10, 12")
    k(f"s_add_u32 s48, s48, {RED_OFF}")
    k("v_add_u32 v16, s48, v2")
    k("s_xor_b32 s49, s10, 1")
    k("s_lshl_b32 s49, s49, 12")
    k(f"s_add_u32 s49, s49, {RED_OFF}")
    k("v_add_u32 v17, s49, v2")
    k("s_nop 7")
    k("s_cmp_eq_u32 s12, 0")
    k("s_cbranch_scc0 K1_H1")
    for i in range(4):
        k(f"ds_write_b128 v16, v[{ACC+16+4*i}:{ACC+16+4*i+3}] offset:{i*1024}")
    k("s_branch K1_HX")
    k("K1_H1:")
    for i in range(4):
        k(f"ds_write_b128 v16, v[{ACC+4*i}:{ACC+4*i+3}] offset:{i*1024}")
    k("s_waitcnt lgkmcnt(0)")
    for i in range(16): k(f"v_mov_b32 v{ACC+i}, v{ACC+16+i}")
    k("K1_HX:")
    k("s_waitcnt lgkmcnt(0)")
    k("s_barrier")
    for i in range(4):
        k(f"ds_read_b128 v[{64+4*i}:{64+4*i+3}], v17 offset:{i*1024}")
    k("v_lshlrev_b32 v18, 1, v5")
    k("s_add_u32 s48, s15, 4088")
    k("v_sub_u32 v18, s48, v18")
    k("v_subrev_u32 v18, 1536, v18")
    for i in range(4):
        k(f"ds_read_b64 v[{80+2*i}:{80+2*i+1}], v18 offset:{(3-i)*512}")
    k("s_and_b32 s48, s13, 1")
    k("s_cmp_eq_u32 s48, 0")
    k("s_cbranch_scc0 K1_DHI")
    k("s_lshl_b32 s21, s21, 16")
    k("K1_DHI:")
    k("s_and_b32 s21, s21, 0xffff0000")
    k("s_waitcnt vmcnt(0) lgkmcnt(0)")
    for i in range(4):
        a = ACC + 4*i
        for j in range(4): k(f"v_add_f32 v{a+j}, v{a+j}, v{64+4*i+j}")
        k(f"v_and_b32 v90, 0xffff0000, v{80+2*i+1}")
        k(f"v_lshlrev_b32 v91, 16, v{80+2*i+1}")
        k(f"v_and_b32 v92, 0xffff0000, v{80+2*i}")
        k(f"v_lshlrev_b32 v93, 16, v{80+2*i}")
        for j in range(4): k(f"v_fmac_f32 v{a+j}, s21, v{90+j}")
        k(f"v_lshlrev_b32 v94, 16, v{QV+2*i}")
        k(f"v_and_b32 v95, 0xffff0000, v{QV+2*i}")
        k(f"v_lshlrev_b32 v96, 16, v{QV+2*i+1}")
        k(f"v_and_b32 v97, 0xffff0000, v{QV+2*i+1}")
        for j in range(4): k(f"v_fma_f32 v{98+j}, v{94+j}, v{SV+8*i+2*j}, v{SV+8*i+2*j+1}")
        k("v_mov_b32 v102, s24") if i == 0 else None
        for j in range(4): k(f"v_fma_f32 v{98+j}, v{98+j}, s25, v102")
        for j in range(4): k(f"v_mul_f32 v{98+j}, v{98+j}, v{a+j}")
        for j in range(4): k(f"v_fma_f32 v{98+j}, v{98+j}, s26, v{94+j}")
        k(f"v_cvt_pk_bf16_f32 v{104+2*i}, v98, v99")
        k(f"v_cvt_pk_bf16_f32 v{104+2*i+1}, v100, v101")
        k(f"buffer_store_dwordx2 v[{104+2*i}:{104+2*i+1}], v6, s[44:47], s14 offen offset:{i*512}")
    k("s_endpgm")

    k("K1_W1:")
    k(f"s_load_dwordx2 s[4:5], s[0:1], {A_W1}")
    k(f"s_load_dwordx2 s[8:9], s[0:1], {A_WS}")
    k("s_sub_u32 s3, s2, 256")
    k("v_lshrrev_b32 v1, 6, v0")
    k("v_and_b32 v2, 63, v0")
    k("s_nop 0")
    k("v_readfirstlane_b32 s10, v1")
    k("v_and_b32 v3, 31, v2")
    k("v_lshrrev_b32 v4, 5, v2")
    k(f"v_mul_u32_u24 v5, {8*3584}, v4")
    k("v_lshl_add_u32 v5, v3, 1, v5")
    k("s_lshl_b32 s11, s3, 6")
    k("v_add_u32 v5, s11, v5")
    k(f"v_add_u32 v6, {2*3584}, v5")
    k(f"v_add_u32 v7, {4*3584}, v5")
    k(f"v_add_u32 v8, {6*3584}, v5")
    k("v_lshlrev_b32 v9, 5, v4")
    k("v_lshlrev_b32 v10, 4, v2")
    k("s_waitcnt lgkmcnt(0)")
    k.srd(12, 4, 512*3584)
    k.srd(16, 8, 3072*4, WS_MOD)
    k.srd(20, 8, 56*32*1024, WS_W1F)
    k.srd(24, 8, 0x4000, WS_UT)
    k(f"s_mul_i32 s28, s10, {8*16*3584}")
    k("s_lshl_b32 s29, s10, 9")
    k(f"s_add_u32 s30, s29, {2048*4}")
    k(f"s_add_u32 s31, s29, {1536*4}")
    k("s_lshl_b32 s32, s3, 15")
    k("s_lshl_b32 s33, s10, 13")
    k("s_add_u32 s32, s32, s33")
    k("v_mov_b32 v12, 0")
    k("v_mov_b32 v13, 0")
    k("s_mov_b32 s34, 0x3f803f80")
    k("s_mov_b32 s35, 8")
    k("K1_W1_LOOP:")
    for jx in range(8):
        k(f"buffer_load_short_d16_hi v{16+jx}, v{5+jx//2}, s[12:15], s28 offen offset:{(jx%2)*3584}")
    k("buffer_load_dwordx4 v[24:27], v9, s[16:19], s30 offen")
    k("buffer_load_dwordx4 v[28:31], v9, s[16:19], s30 offen offset:16")
    k("buffer_load_dwordx4 v[32:35], v9, s[16:19], s31 offen")
    k("buffer_load_dwordx4 v[36:39], v9, s[16:19], s31 offen offset:16")
    k("s_waitcnt vmcnt(0)")
    for jx in range(8):
        k(f"v_fmac_f32 v13, v{16+jx}, v{32+jx}")
    for jx in range(8):
        k(f"v_mul_f32 v{16+jx}, v{16+jx}, v{24+jx}")
    for i in range(4):
        k(f"v_cvt_pk_bf16_f32 v{40+i}, v{16+2*i}, v{17+2*i}")
    for i in range(4):
        k(f"v_dot2_f32_bf16 v12, v{40+i}, s34, v12")
    k("buffer_store_dwordx4 v[40:43], v10, s[20:23], s32 offen")
    k(f"s_add_u32 s28, s28, {16*3584}")
    k("s_add_u32 s30, s30, 64")
    k("s_add_u32 s31, s31, 64")
    k("s_add_u32 s32, s32, 1024")
    k("s_sub_u32 s35, s35, 1")
    k("s_cmp_lg_u32 s35, 0")
    k("s_cbranch_scc1 K1_W1_LOOP")
    k("v_lshlrev_b32 v14, 3, v0")
    k("s_nop 2")
    k("ds_write_b64 v14, v[12:13]")
    k("s_waitcnt lgkmcnt(0)")
    k("s_barrier")
    k("v_cmp_gt_u32 vcc, 32, v0")
    k("s_and_saveexec_b64 s[36:37], vcc")
    k("s_cbranch_execz K1_END")
    for i in range(8):
        k(f"ds_read_b64 v[{16+2*i}:{17+2*i}], v14 offset:{i*256}")
    k("s_waitcnt lgkmcnt(0)")
    for i in range(1, 8):
        k(f"v_add_f32 v16, v16, v{16+2*i}")
        k(f"v_add_f32 v17, v17, v{17+2*i}")
    k("s_lshl_b32 s11, s3, 7")
    k("v_lshlrev_b32 v14, 2, v0")
    k("v_add_u32 v14, s11, v14")
    k("buffer_store_dword v16, v14, s[24:27], 0 offen")
    k("s_movk_i32 s11, 0x2000")
    k("buffer_store_dword v17, v14, s[24:27], s11 offen")
    k("s_endpgm")

    k("K1_W2:")
    k(f"s_load_dwordx2 s[4:5], s[0:1], {A_W2}")
    k(f"s_load_dwordx2 s[8:9], s[0:1], {A_WS}")
    k("s_sub_u32 s3, s2, 312")
    k("v_lshrrev_b32 v1, 6, v0")
    k("v_and_b32 v2, 63, v0")
    k("s_nop 0")
    k("v_readfirstlane_b32 s10, v1")
    k("v_and_b32 v3, 31, v2")
    k("v_lshrrev_b32 v4, 5, v2")
    k("v_lshlrev_b32 v5, 12, v4")
    k("v_lshl_add_u32 v5, v3, 1, v5")
    k("s_lshl_b32 s11, s10, 8")
    k("v_add_u32 v5, s11, v5")
    k("v_lshlrev_b32 v10, 4, v2")
    k("s_waitcnt lgkmcnt(0)")
    k.srd(12, 4, 1792*1024)
    k.srd(20, 8, 16*112*1024, WS_W2F)
    k("s_lshl_b32 s28, s3, 15")
    k("s_add_u32 s29, s28, 8192")
    k("s_add_u32 s30, s28, 16384")
    k("s_add_u32 s31, s30, 8192")
    for b in range(2):
        for a in range(4):
            for jx in range(8):
                so = f"s{28 + 2*b + jx//4}"
                op = "buffer_load_short_d16" if jx % 2 == 0 else "buffer_load_short_d16_hi"
                k(f"{op} v{16+ (b*4+a)*8 + jx}, v5, s[12:15], {so} offen offset:{(jx%4)*1024 + a*64}")
    k(f"s_mul_i32 s32, s10, {4*112*1024}")
    k("s_lshl_b32 s33, s3, 11")
    k("s_add_u32 s32, s32, s33")
    for b in range(2):
        for a in range(4):
            f = b*4+a
            k(f"s_waitcnt vmcnt({(7-f)*8 + f})")
            for i in range(4):
                k(f"v_or_b32 v{90+4*f+i}, v{16+f*8+2*i}, v{16+f*8+2*i+1}")
            k(f"s_add_u32 s33, s32, {a*112*1024 + b*1024}")
            k(f"buffer_store_dwordx4 v[{90+4*f}:{90+4*f+3}], v10, s[20:23], s33 offen")
    k("K1_END:")
    k("s_endpgm")
    return k.text() + kd(name, 240)

K2_STAT = 131072
K2_LDS = K2_STAT + 2048
def gen_k2(name):
    k = K()
    header(k, name)
    k("s_cmp_ge_u32 s2, 224")
    k("s_cbranch_scc1 K2_END")
    k(f"s_load_dwordx2 s[8:9], s[0:1], {A_WS}")
    k("v_lshrrev_b32 v1, 6, v0")
    k("v_and_b32 v0, 63, v0")
    k("s_nop 0")
    k("v_readfirstlane_b32 s10, v1")
    k("s_and_b32 s11, s2, 15")
    k("s_lshr_b32 s12, s2, 4")
    k("s_lshl_b32 s13, s12, 2")
    k("s_add_u32 s13, s13, s10")
    k("s_waitcnt lgkmcnt(0)")
    k.srd(16, 8, 0x200000, WS_X1T)
    k.srd(20, 8, 56*32*1024, WS_W1F)
    k.srd(24, 8, 0x4000, WS_UT)
    k.srd(28, 8, 64*112*1024, WS_HID)
    k.srd(32, 8, 0x200000, WS_X1R)
    k("v_lshrrev_b32 v2, 4, v0")
    k("v_and_b32 v3, 15, v0")
    k("v_lshlrev_b32 v4, 2, v2")
    k("v_xor_b32 v3, v3, v4")
    k("v_lshlrev_b32 v3, 4, v3")
    k("v_lshl_add_u32 v3, v2, 12, v3")
    k("s_lshl_b32 s14, s11, 8")
    k("v_add_u32 v3, s14, v3")
    k("v_lshlrev_b32 v4, 4, v0")
    k("s_lshl_b32 s36, s10, 14")
    k("s_lshl_b32 s37, s10, 10")
    k("s_lshl_b32 s38, s13, 15")
    for kk in range(32):
        k("s_mov_b32 m0, s37")
        k("s_add_u32 s37, s37, 4096")
        k("buffer_load_dwordx4 v3, s[16:19], s36 offen lds")
        k("s_add_u32 s36, s36, 65536")
        k(f"buffer_load_dwordx4 a[{4*kk}:{4*kk+3}], v4, s[20:23], s38 offen")
        k("s_add_u32 s38, s38, 1024")
    k("v_bfe_u32 v5, v0, 2, 2")
    k("v_and_b32 v6, 3, v0")
    k("v_bfe_u32 v7, v0, 4, 1")
    k("v_lshrrev_b32 v12, 5, v0")
    k("v_lshlrev_b32 v13, 3, v12")
    k("v_add_u32 v13, v13, v5")
    k("v_lshlrev_b32 v13, 8, v13")
    k("v_lshl_add_u32 v13, v7, 5, v13")
    k("v_lshl_add_u32 v13, v6, 3, v13")
    for bp in range(4):
        k(f"s_add_u32 s15, s10, {bp}")
        k("s_and_b32 s15, s15, 3")
        k("v_xor_b32 v14, s15, v5")
        k(f"v_lshl_add_u32 v{8+bp}, v14, 6, v13")
    ACC = 64
    XF = [16, 32]
    for i in range(64): k(f"v_mov_b32 v{ACC+i}, 0")
    k("v_mov_b32 v50, 0"); k("v_mov_b32 v51, 0"); k("v_mov_b32 v52, 0"); k("v_mov_b32 v53, 0")
    k("s_mov_b32 s39, 0x3f803f80")
    def xloads(kk, st):
        out = []
        for bp in range(4):
            off = (kk % 16)*4096
            out.append(f"ds_read_b64_tr_b16 v[{XF[st]+4*bp}:{XF[st]+4*bp+1}], v{8+bp} offset:{off}")
            out.append(f"ds_read_b64_tr_b16 v[{XF[st]+4*bp+2}:{XF[st]+4*bp+3}], v{8+bp} offset:{off+1024}")
        return out
    for g in range(8):
        k(f"s_waitcnt vmcnt({2*(28-4*g)})")
        k("s_barrier")
        if g == 4:
            for bp in range(4): k(f"v_add_u32 v{8+bp}, 0x10000, v{8+bp}")
        for x in xloads(4*g, 0): k(x)
        for s in range(4):
            kk = 4*g + s
            st = s % 2
            k("s_waitcnt lgkmcnt(0)")
            ls = xloads(kk+1, 1-st) if s < 3 else []
            for bp in range(4):
                k(f"v_mfma_f32_32x32x16_bf16 v[{ACC+16*bp}:{ACC+16*bp+15}], a[{4*kk}:{4*kk+3}], v[{XF[st]+4*bp}:{XF[st]+4*bp+3}], v[{ACC+16*bp}:{ACC+16*bp+15}]")
                for x in ls[2*bp:2*bp+2]: k(x)
                if bp == 0:
                    for j in range(4):
                        k(f"v_dot2_f32_bf16 v{50+(j&1)}, v{XF[st]+j}, s39, v{50+(j&1)}")
                if bp == 1:
                    for j in range(4):
                        k(f"v_dot2_f32_bf16 v{52+(j&1)}, v{XF[st]+j}, v{XF[st]+j}, v{52+(j&1)}")
    k("v_lshlrev_b32 v14, 4, v12")
    k("s_lshl_b32 s15, s13, 7")
    k("s_add_u32 s40, s15, 0x2000")
    for g in range(4):
        k(f"buffer_load_dwordx4 v[{16+4*g}:{16+4*g+3}], v14, s[24:27], s15 offen offset:{g*32}")
    for g in range(4):
        k(f"buffer_load_dwordx4 v[{32+4*g}:{32+4*g+3}], v14, s[24:27], s40 offen offset:{g*32}")
    k("s_nop 2")
    k("v_add_f32 v50, v50, v51")
    k("v_add_f32 v51, v52, v53")
    k("v_lshlrev_b32 v15, 3, v0")
    k("s_lshl_b32 s15, s10, 9")
    k(f"s_add_u32 s15, s15, {K2_STAT}")
    k("v_add_u32 v48, s15, v15")
    k("ds_write_b64 v48, v[50:51]")
    k("s_waitcnt lgkmcnt(0)")
    k("s_barrier")
    k("s_cmp_ge_u32 s12, 8")
    k("s_cbranch_scc1 K2_NOX")
    k("s_lshl_b32 s15, s12, 14")
    k("v_subrev_u32 v49, 0x10000, v8")
    k("v_add_u32 v49, s15, v49")
    for s in range(4):
        k(f"ds_read_b64_tr_b16 v[{128+4*s}:{128+4*s+1}], v49 offset:{s*4096}")
        k(f"ds_read_b64_tr_b16 v[{128+4*s+2}:{128+4*s+3}], v49 offset:{s*4096+1024}")
    k("v_and_b32 v54, 31, v0")
    k("s_lshl_b32 s15, s11, 7")
    k("s_lshl_b32 s41, s10, 5")
    k("s_add_u32 s15, s15, s41")
    k("v_add_u32 v54, s15, v54")
    k("v_lshlrev_b32 v54, 10, v54")
    k("v_lshl_add_u32 v54, v12, 4, v54")
    k("s_lshl_b32 s15, s12, 7")
    k("s_waitcnt lgkmcnt(0)")
    for s in range(4):
        k(f"buffer_store_dwordx4 v[{128+4*s}:{128+4*s+3}], v54, s[32:35], s15 offen offset:{s*32}")
    k("K2_NOX:")
    k("v_and_b32 v15, 31, v0")
    k("v_lshlrev_b32 v15, 3, v15")
    for bp in range(4):
        k(f"s_add_u32 s15, s10, {bp}")
        k("s_and_b32 s15, s15, 3")
        k("s_lshl_b32 s15, s15, 9")
        k(f"s_add_u32 s15, s15, {K2_STAT}")
        k("v_add_u32 v48, s15, v15")
        k(f"ds_read_b64 v[{144+4*bp}:{144+4*bp+1}], v48")
        k(f"ds_read_b64 v[{144+4*bp+2}:{144+4*bp+3}], v48 offset:256")
    k("s_waitcnt lgkmcnt(0)")
    for bp in range(4):
        b = 144+4*bp
        k(f"v_add_f32 v{b}, v{b}, v{b+2}")
        k(f"v_add_f32 v{b+1}, v{b+1}, v{b+3}")
        ln_finish(k, f"v{b}", f"v{b+1}", f"v{b+2}", f"v{b+3}", ["v48", "v49"])
    k("s_waitcnt vmcnt(0)")
    for bp in range(4):
        b = 144+4*bp
        a = ACC + 16*bp
        for i in range(16):
            k(f"v_fma_f32 v{a+i}, -v{b+3}, v{16+i}, v{a+i}")
        for i in range(16):
            k(f"v_fma_f32 v{a+i}, v{a+i}, v{b+2}, v{32+i}")
        for i in range(8):
            k(f"v_cvt_pk_bf16_f32 v{160+i}, v{a+2*i}, v{a+2*i+1}")
        for i in range(8):
            k(f"v_pk_max_i16 v{160+i}, v{160+i}, 0")
        k(f"s_add_u32 s15, s10, {bp}")
        k("s_and_b32 s15, s15, 3")
        k("s_lshl_b32 s41, s11, 2")
        k("s_add_u32 s15, s15, s41")
        k(f"s_mul_i32 s15, s15, {112*1024}")
        k("s_lshl_b32 s41, s13, 11")
        k("s_add_u32 s15, s15, s41")
        k(f"buffer_store_dwordx4 v[160:163], v4, s[28:31], s15 offen")
        k(f"buffer_store_dwordx4 v[164:167], v4, s[28:31], s15 offen offset:1024")
        k("s_nop 1")
    k("K2_END:")
    k("s_endpgm")
    return k.text() + kd(name, 256+128, accum=256)

K3_LDS = 4*3*4096
def gen_k3(name):
    k = K()
    header(k, name)
    k("s_cmp_ge_u32 s2, 256")
    k("s_cbranch_scc1 K3_END")
    k(f"s_load_dwordx2 s[8:9], s[0:1], {A_WS}")
    k(f"s_load_dwordx2 s[6:7], s[0:1], {A_OUT}")
    k("v_lshrrev_b32 v1, 6, v0")
    k("v_and_b32 v0, 63, v0")
    k("s_nop 0")
    k("v_readfirstlane_b32 s10, v1")
    k("s_and_b32 s11, s2, 7")
    k("s_lshl_b32 s11, s11, 1")
    k("s_bfe_u32 s12, s2, 0x10004")
    k("s_add_u32 s11, s11, s12")
    k("s_bfe_u32 s12, s2, 0x10003")
    k("s_lshl_b32 s12, s12, 4")
    k("s_add_u32 s11, s11, s12")
    k("s_lshr_b32 s12, s2, 5")
    k("s_waitcnt lgkmcnt(0)")
    k.srd(16, 8, 16*112*1024, WS_W2F)
    k.srd(20, 8, 64*112*1024, WS_HID)
    k.srd(24, 8, 0x200000, WS_X1R)
    k.srd(28, 6, 0x200000)
    k.srd(32, 8, 3072*4, WS_MOD)
    k("v_lshlrev_b32 v2, 4, v0")
    k(f"s_mul_i32 s13, s12, {2*112*1024}")
    k("v_add_u32 v3, s13, v2")
    k(f"v_add_u32 v4, {112*1024}, v3")
    k(f"s_mul_i32 s13, s11, {2*112*1024}")
    k("v_add_u32 v5, s13, v2")
    k(f"v_add_u32 v6, {112*1024}, v5")
    k(f"s_mul_i32 s14, s10, {28*1024}")
    ACC = 16
    RING = 80
    P = 8
    def issue(step):
        sl = RING + 16*(step % P)
        k(f"buffer_load_dwordx4 v[{sl}:{sl+3}], v3, s[16:19], s14 offen")
        k(f"buffer_load_dwordx4 v[{sl+4}:{sl+7}], v4, s[16:19], s14 offen")
        k(f"buffer_load_dwordx4 v[{sl+8}:{sl+11}], v5, s[20:23], s14 offen")
        k(f"buffer_load_dwordx4 v[{sl+12}:{sl+15}], v6, s[20:23], s14 offen")
        k("s_add_u32 s14, s14, 1024")
    for s in range(P): issue(s)
    for i in range(64): k(f"v_mov_b32 v{ACC+i}, 0")
    for s in range(28):
        inflight = min(P, 28 - s)
        k(f"s_waitcnt vmcnt({4*(inflight-1)})")
        sl = RING + 16*(s % P)
        for a in range(2):
            for b in range(2):
                c = ACC + 16*(a*2+b)
                k(f"v_mfma_f32_32x32x16_bf16 v[{c}:{c+15}], v[{sl+4*a}:{sl+4*a+3}], v[{sl+8+4*b}:{sl+8+4*b+3}], v[{c}:{c+15}]")
        if s + P < 28: issue(s + P)
    k("s_lshr_b32 s15, s10, 1")
    k("s_and_b32 s36, s10, 1")
    k("v_and_b32 v7, 31, v0")
    k("v_lshrrev_b32 v8, 5, v0")
    k("s_lshl_b32 s37, s11, 6")
    k("s_lshl_b32 s38, s36, 5")
    k("s_add_u32 s37, s37, s38")
    k("v_add_u32 v7, s37, v7")
    k("v_lshlrev_b32 v7, 10, v7")
    k("v_lshl_add_u32 v7, v8, 3, v7")
    k("s_lshl_b32 s37, s12, 7")
    k("s_lshl_b32 s38, s15, 6")
    k("s_add_u32 s37, s37, s38")
    for g in range(4):
        k(f"buffer_load_dwordx2 v[{208+2*g}:{208+2*g+1}], v7, s[24:27], s37 offen offset:{g*16}")
    k("v_lshlrev_b32 v9, 4, v8")
    k("s_lshl_b32 s38, s37, 1")
    k(f"s_add_u32 s38, s38, {2560*4}")
    for g in range(4):
        k(f"buffer_load_dwordx4 v[{216+4*g}:{216+4*g+3}], v9, s[32:35], s38 offen offset:{g*32}")
    k("s_nop 7")
    k("s_nop 3")
    for t in range(4):
        k(f"s_cmp_eq_u32 s10, {t}")
        k(f"s_cbranch_scc1 K3_SKIP{t}")
        k(f"s_sub_u32 s39, s10, {t+1}")
        k("s_and_b32 s39, s39, 3")
        k(f"s_add_u32 s39, s39, {3*t}")
        k("s_lshl_b32 s39, s39, 12")
        k("v_add_u32 v10, s39, v2")
        for qd in range(4):
            k(f"ds_write_b128 v10, v[{ACC+16*t+4*qd}:{ACC+16*t+4*qd+3}] offset:{qd*1024}")
        k(f"K3_SKIP{t}:")
    for t in range(4):
        k(f"s_cmp_eq_u32 s10, {t}")
        k(f"s_cbranch_scc0 K3_MV{t}")
        for i in range(16): k(f"v_mov_b32 v{80+i}, v{ACC+16*t+i}")
        k(f"K3_MV{t}:")
    k("s_waitcnt lgkmcnt(0)")
    k("s_barrier")
    k(f"s_mul_i32 s39, s10, {3*4096}")
    k("v_add_u32 v10, s39, v2")
    for sidx in range(3):
        for qd in range(4):
            r = 96 + 16*sidx + 4*qd
            k(f"ds_read_b128 v[{r}:{r+3}], v10 offset:{sidx*4096+qd*1024}")
    k("s_waitcnt lgkmcnt(0)")
    for sidx in range(3):
        for i in range(16):
            k(f"v_add_f32 v{80+i}, v{80+i}, v{96+16*sidx+i}")
    k("s_waitcnt vmcnt(0)")
    for g in range(4):
        k(f"v_lshlrev_b32 v150, 16, v{208+2*g}")
        k(f"v_and_b32 v151, 0xffff0000, v{208+2*g}")
        k(f"v_lshlrev_b32 v152, 16, v{208+2*g+1}")
        k(f"v_and_b32 v153, 0xffff0000, v{208+2*g+1}")
        for r in range(4):
            k(f"v_fma_f32 v{150+r}, v{80+4*g+r}, v{216+4*g+r}, v{150+r}")
        k(f"v_cvt_pk_bf16_f32 v{160+2*g}, v150, v151")
        k(f"v_cvt_pk_bf16_f32 v{160+2*g+1}, v152, v153")
        k(f"buffer_store_dwordx2 v[{160+2*g}:{160+2*g+1}], v7, s[28:31], s37 offen offset:{g*16}")
    k("K3_END:")
    k("s_endpgm")
    return k.text() + kd(name, 240)

HEADER_COMMENTS = """; adaLN + H3 long-conv + FFN, 4 launches (generated by dev/gen.py)
"""
def build(launches=None):
    names = ["prep_kernel", "conv_kernel", "gemm1_kernel", "gemm2_kernel"]
    grids = [N_MOD+N_STAT+N_TILE, 368, 224, 256]
    ldss = [8192, K1_LDS, K2_LDS, K3_LDS]
    s = HEADER_COMMENTS
    for n, g, l in zip(names, grids, ldss):
        s += f"; @launch kernel={n} grid=({g},1,1) block=(256,1,1) lds={l}\n"
    s += '.amdgcn_target "amdgcn-amd-amdhsa--gfx950"\n.text\n'
    s += gen_k0(names[0]) + gen_k1(names[1]) + gen_k2(names[2]) + gen_k3(names[3])
    return s, list(zip(names, grids, ldss))

if __name__ == "__main__":
    s, _ = build()
    out = sys.argv[1] if len(sys.argv) > 1 else f"cdna_kernels/{NAME}.s"
    open(out, "w").write(s)
    print("wrote", out, len(s), "bytes")
```

```python
import sys
NAME = "adaLN_cond__ssm_conv_h3__dense_activation_relu__prompt"
A_Q, A_K, A_V, A_SHK, A_SSMK, A_SSMD, A_BX, A_W1, A_W2, A_C, A_WMOD, A_OUT, A_DBG, A_WS = [8*i for i in range(14)]

WS_KVT = 0x000000
WS_QT  = 0x200000
WS_ST1 = 0x400000
WS_MOD = 0x404000
WS_UT  = 0x410000
WS_X1T = 0x500000
WS_X1R = 0x700000
WS_W1F = 0x900000
WS_W2F = 0xB00000
WS_HID = 0xD00000
WS_X1S = 0x1500000
WS_MODP = 0x440000
WS_FLAG = 0x430000
WS_ST2 = 0x420000
WS_PROF = 0x3000000

NT = "nt"
CODE_PF = 1
X_NOTILE = 0
X_NOMOD = 0
X_NOROLE = 0
K2_AH = 12
K2_PREF = 0
PB_PREF = 1
PC_PREF = 1
K3_P = 8

class K:
    def __init__(self): self.l = []; self.srdl = []
    def __call__(self, s=""):
        for x in s.split("\n"):
            x = x.strip()
            if not x: continue
            if x.endswith(":") or x.startswith(";") or x.startswith("."): self.l.append(x)
            else: self.l.append("    " + x)
    def text(self):
        self.check()
        return "\n".join(self.l) + "\n"
    def check(self):
        import re
        last_write = {}
        srd_lines = set(self.srdl)
        for n, ln in enumerate(self.l):
            t = ln.strip()
            if t.startswith(";") or t.endswith(":") or t.startswith("."): continue
            m = re.search(r"s\[(\d+):(\d+)\]", t) if t.startswith("buffer_") else None
            if m:
                for r in range(int(m.group(1)), int(m.group(2))+1):
                    w = last_write.get(r)
                    if w is None or not w[2]:
                        print(f"SRD-CHECK: line {n}: '{t}' uses s{r} last written by: {w}", file=sys.stderr)
            op = t.split()[0]
            if op.startswith("s_") and not op.startswith(("s_cmp", "s_cbranch", "s_branch", "s_waitcnt", "s_barrier", "s_nop", "s_endpgm", "s_sleep", "s_setprio")) or op.startswith(("v_readfirstlane", "v_readlane")) or op.startswith("v_cmp"):
                d = t.split()[1].rstrip(",")
                m2 = re.match(r"s\[(\d+):(\d+)\]", d); m1 = re.match(r"s(\d+)$", d)
                regs = range(int(m2.group(1)), int(m2.group(2))+1) if m2 else ([int(m1.group(1))] if m1 else [])
                for r in regs: last_write[r] = (n, t, n in srd_lines)
    def stamp(self, i): self(f";STAMP {i}")
    def srd(self, d, p, size, off=0):
        n0 = len(self.l)
        self.srdl += [n0, n0+1, n0+2, n0+3]
        if off:
            self(f"s_add_u32 s{d}, s{p}, {off:#x}")
            self(f"s_addc_u32 s{d+1}, s{p+1}, 0")
        else:
            self(f"s_mov_b32 s{d}, s{p}")
            self(f"s_mov_b32 s{d+1}, s{p+1}")
        self(f"s_mov_b32 s{d+2}, {size:#x}")
        self(f"s_mov_b32 s{d+3}, 0x20000")

def kd(name, vgpr, sgpr=96, accum=None):
    if accum is None: accum = (vgpr + 3)//4*4
    return f"""
.section .rodata,"a"
.p2align 6
.amdhsa_kernel {name}
  .amdhsa_next_free_vgpr {vgpr}
  .amdhsa_next_free_sgpr {sgpr}
  .amdhsa_accum_offset {accum}
  .amdhsa_group_segment_fixed_size 0
  .amdhsa_kernarg_size 112
  .amdhsa_user_sgpr_count 2
  .amdhsa_user_sgpr_kernarg_segment_ptr 1
  .amdhsa_system_sgpr_workgroup_id_x 1
  .amdhsa_float_denorm_mode_32 3
  .amdhsa_float_denorm_mode_16_64 3
.end_amdhsa_kernel
.text
"""
def header(k, name):
    k(f".globl {name}"); k(".p2align 8"); k(f".type {name},@function"); k(f"{name}:")

def entry(k, end, first=False):
    if first and CODE_PF:
        k("s_cmp_ge_u32 s2, 16")
        k("s_cbranch_scc1 CPF_DONE")
        k("s_getpc_b64 s[6:7]")
        k("CPF_PC:")
        k("v_lshlrev_b32 v1, 7, v0")
        k("v_min_u32 v1, (CODE_END - CPF_PC - 4), v1")
        k(f"global_load_dword v143, v1, s[6:7] {NT}")
        k("CPF_DONE:")
    k("s_cmp_ge_u32 s2, 256")
    k(f"s_cbranch_scc1 {end}")
    k(f"s_load_dwordx2 s[4:5], s[0:1], {A_WS}")
    k("v_lshrrev_b32 v1, 6, v0")
    k("v_and_b32 v0, 63, v0")
    k("s_nop 0")
    k("v_readfirstlane_b32 s3, v1")

def round_bf16(k, dst, src):
    k(f"v_cvt_pk_bf16_f32 {dst}, {src}, {src}")
    k(f"v_and_b32 {dst}, 0xffff0000, {dst}")

def ln_finish(k, s1, s2, rstd, mean, tmp):
    t0, t1 = tmp
    k(f"v_mul_f32 {mean}, 0x3b000000, {s1}")
    k(f"v_mul_f32 {t0}, 0x3b000000, {s2}")
    k(f"v_fma_f32 {t0}, -{mean}, {mean}, {t0}")
    k(f"v_max_f32 {t0}, 0, {t0}")
    round_bf16(k, t0, t0)
    k(f"v_add_f32 {t0}, 0x3727c5ac, {t0}")
    round_bf16(k, t0, t0)
    k(f"v_sqrt_f32 {t0}, {t0}")
    k("s_nop 0")
    round_bf16(k, t0, t0)
    k(f"v_rcp_f32 {rstd}, {t0}")
    round_bf16(k, mean, mean)

PA_MOD = 0
PA_W1 = 4096
PA_W2 = PA_W1 + 8192
PA_TQ = PA_W2 + 8192
PA_TKV = PA_TQ + 8192
PA_LDS = PA_TKV + 8192
def phase_a(k, END):
    k(f"s_load_dwordx4 s[8:11], s[0:1], {A_Q}")
    k("s_cmp_ge_u32 s3, 4")
    k("s_cbranch_scc1 PA_AUX")
    if X_NOTILE:
        k("s_waitcnt lgkmcnt(0)"); k("s_barrier"); k(f"s_branch {END}")
    k(f"s_load_dwordx4 s[12:15], s[0:1], {A_V}")
    k("s_and_b32 s16, s2, 7")
    k("s_lshr_b32 s17, s2, 3")
    k("v_and_b32 v1, 31, v0")
    k("v_lshrrev_b32 v2, 5, v0")
    k("s_lshl_b32 s18, s3, 1")
    k("v_add_u32 v2, s18, v2")
    k("s_lshl_b32 s18, s17, 6")
    k("v_lshlrev_b32 v3, 3, v2")
    k("v_add_u32 v3, s18, v3")
    k("s_lshl_b32 s18, s16, 6")
    k("v_lshlrev_b32 v4, 1, v1")
    k("v_add_u32 v4, s18, v4")
    k("v_lshlrev_b32 v5, 10, v3")
    k("v_lshl_add_u32 v5, v4, 1, v5")
    k("v_subrev_u32 v6, 3072, v5")
    k("v_lshlrev_b32 v7, 3, v4")
    k("s_movk_i32 s18, 0x1000")
    k("s_waitcnt lgkmcnt(0)")
    k.srd(24, 10, 0x200000)
    k.srd(28, 12, 0x200000)
    k.srd(20, 8, 0x200000)
    k.srd(32, 14, 4096)
    for i in range(8):
        so = "0" if i < 4 else "s18"
        k(f"buffer_load_dword v{32+i}, v5, s[20:23], {so} offen offset:{(i%4)*1024} {NT}")
    k(f"buffer_load_dwordx4 v[40:43], v7, s[32:35], 0 offen {NT}")
    for i in range(3):
        k(f"buffer_load_dword v{10+i}, v6, s[24:27], 0 offen offset:{i*1024} {NT}")
    for base, srd in [(13, 24), (22, 28)]:
        for i in range(8):
            so = "0" if i < 4 else "s18"
            k(f"buffer_load_dword v{base+i}, v5, s[{srd}:{srd+3}], {so} offen offset:{(i%4)*1024} {NT}")
    k.srd(36, 4, 0x200000, WS_KVT)
    k.srd(40, 4, 0x200000, WS_QT)
    k("v_and_b32 v8, 7, v1")
    k("v_xor_b32 v9, v2, v8")
    k("v_lshlrev_b32 v44, 8, v1")
    k("v_lshl_add_u32 v45, v9, 4, v44")
    k(f"v_add_u32 v45, {PA_TQ}, v45")
    k("v_xor_b32 v9, 7, v9")
    k("v_lshl_add_u32 v44, v9, 4, v44")
    k(f"v_add_u32 v44, {PA_TKV}, v44")
    k("v_lshrrev_b32 v96, 3, v0")
    k("s_lshl_b32 s45, s3, 4")
    k("v_add_u32 v96, s45, v96")
    k("v_and_b32 v97, 7, v0")
    k("v_bfe_u32 v98, v96, 1, 3")
    k("v_xor_b32 v98, v97, v98")
    k("v_lshlrev_b32 v98, 4, v98")
    k("v_lshl_add_u32 v98, v96, 7, v98")
    k("v_xor_b32 v99, 64, v98")
    k("v_add_u32 v99, 1024, v99")
    k("s_lshl_b32 s45, s16, 6")
    k("v_add_u32 v96, s45, v96")
    k("v_lshlrev_b32 v96, 12, v96")
    k("v_lshl_add_u32 v96, v97, 4, v96")
    k("s_lshl_b32 s46, s17, 7")
    k("s_sub_u32 s47, 3968, s46")
    k("s_add_u32 s48, s46, 32768")
    k("s_add_u32 s49, s47, 32768")
    k("s_mov_b32 s19, 0x05040100")
    k("s_mov_b32 s44, 0x07060302")
    k.stamp(0)
    k("s_waitcnt vmcnt(20)")
    for i in range(4): k(f"v_perm_b32 v{88+i}, v{33+2*i}, v{32+2*i}, s19")
    for i in range(4): k(f"v_perm_b32 v{92+i}, v{33+2*i}, v{32+2*i}, s44")
    k("ds_write_b128 v45, v[88:91]")
    k("ds_write_b128 v45, v[92:95] offset:128")
    k("s_waitcnt vmcnt(0)")
    k.stamp(1)
    for i in range(4):
        k(f"v_lshlrev_b32 v{46+2*i}, 16, v{40+i}")
        k(f"v_and_b32 v{47+2*i}, 0xffff0000, v{40+i}")
    for e in range(2):
        w = 46 + 4*e
        for i in range(11):
            k(f"v_lshlrev_b32 v{60+i}, 16, v{10+i}" if e == 0 else f"v_and_b32 v{60+i}, 0xffff0000, v{10+i}")
        for r in range(8): k(f"v_mul_f32 v{72+r}, v{63+r}, v{w}")
        for j in range(1,4):
            for r in range(8): k(f"v_fmac_f32 v{72+r}, v{63+r-j}, v{w+j}")
        for r in range(8):
            k(f"v_lshlrev_b32 v{60+r}, 16, v{22+r}" if e == 0 else f"v_and_b32 v{60+r}, 0xffff0000, v{22+r}")
        for r in range(8): k(f"v_mul_f32 v{72+r}, v{72+r}, v{60+r}")
        for i in range(4): k(f"v_cvt_pk_bf16_f32 v{80+4*e+i}, v{72+7-2*i}, v{72+6-2*i}")
        k(f"ds_write_b128 v44, v[{80+4*e}:{83+4*e}] offset:{128*e}")
    k("s_waitcnt lgkmcnt(0)")
    k.stamp(2)
    k("s_barrier")
    for m in range(2):
        k(f"ds_read_b128 v[{60+4*m}:{63+4*m}], v{98+m} offset:{PA_TQ}")
        k(f"ds_read_b128 v[{68+4*m}:{71+4*m}], v{98+m} offset:{PA_TKV}")
    k("s_waitcnt lgkmcnt(0)")
    k("buffer_store_dwordx4 v[60:63], v96, s[40:43], s46 offen")
    k("buffer_store_dwordx4 v[68:71], v96, s[36:39], s47 offen")
    k("buffer_store_dwordx4 v[64:67], v96, s[40:43], s48 offen")
    k("buffer_store_dwordx4 v[72:75], v96, s[36:39], s49 offen")
    k("s_barrier")
    k(f"s_branch {END}")

    k("PA_AUX:")
    k(f"s_load_dwordx4 s[12:15], s[0:1], {A_C}")
    k(f"s_load_dwordx4 s[48:51], s[0:1], {A_W1}")
    k(f"s_load_dwordx2 s[52:53], s[0:1], {A_SSMK}")
    k("s_sub_u32 s16, s3, 4")
    k("s_mul_hi_u32 s18, s2, 0x5555556")
    k("s_mul_i32 s17, s18, 48")
    k("s_sub_u32 s19, s2, s17")
    k("v_and_b32 v1, 7, v0")
    k("v_lshrrev_b32 v2, 3, v0")
    k("s_lshl_b32 s17, s18, 2")
    k("s_add_u32 s17, s17, s16")
    k("s_lshl_b32 s17, s17, 3")
    k("v_add_u32 v2, s17, v2")
    k("v_mul_u32_u24 v3, 24576, v2")
    k("v_lshl_add_u32 v3, v1, 4, v3")
    k("s_lshl_b32 s17, s19, 7")
    k("v_add_u32 v3, s17, v3")
    k("v_lshlrev_b32 v4, 3, v2")
    k("v_lshrrev_b32 v5, 5, v0")
    k("s_lshl_b32 s17, s2, 3")
    k("s_lshl_b32 s20, s16, 1")
    k("s_add_u32 s17, s17, s20")
    k("v_add_u32 v5, s17, v5")
    k("v_and_b32 v6, 31, v0")
    k("v_lshlrev_b32 v7, 10, v5")
    k("v_lshl_add_u32 v7, v6, 4, v7")
    k("s_mov_b32 s21, 6144")
    k("s_mov_b32 s22, 12288")
    k("s_mov_b32 s23, 18432")
    k("v_lshlrev_b32 v100, 4, v0")
    k.stamp(8)
    k("s_waitcnt lgkmcnt(0)")
    k.stamp(9)
    k.srd(24, 8, 0x200000)
    k.srd(28, 12, 1024)
    k.srd(32, 14, 512*6144)
    k(f"buffer_load_dwordx4 v[8:11], v7, s[24:27], 0 offen {NT}")
    k(f"buffer_load_dwordx4 v[12:15], v7, s[24:27], 0 offen offset:512 {NT}")
    k("s_cmp_ge_u32 s18, 4")
    k("s_cbranch_scc1 PA_NOMODLD")
    k(f"buffer_load_dwordx2 v[16:17], v4, s[28:31], 0 offen {NT}")
    for i in range(4):
        so = "0" if i == 0 else f"s{20+i}"
        if not X_NOMOD: k(f"buffer_load_dwordx4 v[{20+4*i}:{23+4*i}], v3, s[32:35], {so} offen {NT}")
    k("PA_NOMODLD:")
    k.stamp(10)
    if X_NOROLE: k("s_branch PA_LDONE")
    k("s_cmp_eq_u32 s3, 7")
    k("s_cbranch_scc1 PA_L7")
    k("s_cmp_ge_u32 s2, 224")
    k("s_cbranch_scc1 PA_LDONE")
    k("s_cmp_eq_u32 s3, 4")
    k("s_cbranch_scc0 PA_L56")
    k("s_and_b32 s7, s2, 7")
    k("s_lshr_b32 s6, s2, 3")
    k("v_lshrrev_b32 v101, 3, v0")
    k("v_and_b32 v102, 7, v0")
    k("v_bfe_u32 v103, v0, 4, 1")
    k("v_lshlrev_b32 v103, 2, v103")
    k("v_xor_b32 v102, v102, v103")
    k("v_mul_u32_u24 v101, 3584, v101")
    k("v_lshl_add_u32 v101, v102, 4, v101")
    k("s_lshl_b32 s17, s6, 7")
    k("v_add_u32 v101, s17, v101")
    k(f"s_mul_i32 s54, s7, {64*3584}")
    k(f"s_mov_b32 s55, {PA_W1}")
    k.srd(56, 48, 512*3584)
    for i in range(8):
        k("s_mov_b32 m0, s55")
        k("s_add_u32 s55, s55, 1024")
        k(f"buffer_load_dwordx4 v101, s[56:59], s54 offen {NT} lds")
        k(f"s_add_u32 s54, s54, {8*3584}")
    k("s_branch PA_LDONE")
    k("PA_L56:")
    k("s_lshl_b32 s6, s2, 1")
    k("s_add_u32 s6, s6, s3")
    k("s_sub_u32 s6, s6, 5")
    k("s_and_b32 s7, s6, 3")
    k("s_lshr_b32 s6, s6, 2")
    k("v_lshrrev_b32 v101, 4, v0")
    k("v_and_b32 v102, 15, v0")
    k("v_lshlrev_b32 v103, 2, v101")
    k("v_xor_b32 v102, v102, v103")
    k("v_lshlrev_b32 v102, 4, v102")
    k("v_lshl_add_u32 v101, v101, 10, v102")
    k("s_lshl_b32 s17, s7, 8")
    k("v_add_u32 v101, s17, v101")
    k("s_lshl_b32 s54, s6, 14")
    k("s_sub_u32 s55, s3, 5")
    k("s_lshl_b32 s55, s55, 12")
    k(f"s_add_u32 s55, s55, {PA_W2}")
    k.srd(56, 50, 1792*1024)
    for i in range(4):
        k("s_mov_b32 m0, s55")
        k("s_add_u32 s55, s55, 1024")
        k(f"buffer_load_dwordx4 v101, s[56:59], s54 offen {NT} lds")
        k("s_add_u32 s54, s54, 4096")
    k("s_branch PA_LDONE")
    k("PA_L7:")
    k("s_and_b32 s6, s2, 7")
    k("s_lshl_b32 s6, s6, 6")
    k("s_lshr_b32 s7, s2, 3")
    k("s_lshl_b32 s7, s7, 1")
    k("s_add_u32 s6, s6, s7")
    k("s_lshl_b32 s54, s6, 12")
    k.srd(56, 52, 0x200000)
    for i in range(8):
        k(f"buffer_load_dwordx4 v[{104+4*(i%4)}:{107+4*(i%4)}], v100, s[56:59], s54 offen offset:{(i%4)*1024} {NT}")
        if i == 3: k("s_add_u32 s54, s54, 4096")
    k("PA_LDONE:")
    k.stamp(3)
    k("s_barrier")
    k.srd(36, 4, 0x4000, WS_ST1)
    k.srd(40, 4, 4*12288, WS_MODP)
    k("s_mov_b32 s44, 0x3f803f80")
    for i in range(4): k(f"v_mov_b32 v{40+i}, 0")
    k("s_waitcnt vmcnt(0)")
    k.stamp(4)
    for j in range(8):
        k(f"v_dot2_f32_bf16 v{40+(j&1)}, v{8+j}, s44, v{40+(j&1)}")
        k(f"v_dot2_f32_bf16 v{42+(j&1)}, v{8+j}, v{8+j}, v{42+(j&1)}")
    k("s_nop 2")
    k("v_add_f32 v40, v40, v41")
    k("v_add_f32 v42, v42, v43")
    for dpp in ["quad_perm:[1,0,3,2] row_mask:0xf", "quad_perm:[2,3,0,1] row_mask:0xf", "row_half_mirror row_mask:0xf", "row_mirror row_mask:0xf", "row_bcast:15 row_mask:0xa"]:
        k("s_nop 1")
        k(f"v_add_f32_dpp v40, v40, v40 {dpp} bank_mask:0xf")
        k(f"v_add_f32_dpp v42, v42, v42 {dpp} bank_mask:0xf")
    ln_finish(k, "v40", "v42", "v44", "v45", ["v46", "v47"])
    k("v_mul_f32 v45, v45, v44")
    k("v_sub_f32 v45, 0, v45")
    k("v_lshlrev_b32 v46, 2, v5")
    k("v_cmp_eq_u32 vcc, 16, v6")
    k("s_movk_i32 s45, 0x2000")
    k("s_and_saveexec_b64 s[46:47], vcc")
    k("buffer_store_dword v44, v46, s[36:39], 0 offen")
    k("buffer_store_dword v45, v46, s[36:39], s45 offen")
    k("s_mov_b64 exec, s[46:47]")
    k.stamp(5)
    k("s_cmp_eq_u32 s3, 7")
    k("s_cbranch_scc1 PA_WDONE")
    k("s_cmp_ge_u32 s2, 224")
    k("s_cbranch_scc1 PA_WDONE")
    k("s_cmp_eq_u32 s3, 4")
    k("s_cbranch_scc0 PA_S56")
    k.srd(56, 4, 56*32*1024, WS_W1F)
    k("v_bfe_u32 v101, v0, 2, 2")
    k("v_lshrrev_b32 v102, 5, v0")
    k("v_lshl_add_u32 v102, v102, 3, v101")
    k("v_lshlrev_b32 v102, 7, v102")
    k("v_bfe_u32 v103, v0, 4, 1")
    k("v_lshl_add_u32 v102, v103, 5, v102")
    k("v_and_b32 v103, 3, v0")
    k("v_lshl_add_u32 v102, v103, 3, v102")
    k("v_lshrrev_b32 v101, 1, v101")
    k("v_lshl_add_u32 v101, v101, 6, v102")
    k(f"v_add_u32 v101, {PA_W1}, v101")
    k("v_xor_b32 v102, 64, v101")
    for a in range(2):
        for st in range(4):
            r = 104 + 16*a + 4*st
            k(f"ds_read_b64_tr_b16 v[{r}:{r+1}], v{101+a} offset:{st*2048}")
            k(f"ds_read_b64_tr_b16 v[{r+2}:{r+3}], v{101+a} offset:{st*2048+512}")
        k("s_waitcnt lgkmcnt(0)")
    k("s_lshl_b32 s54, s6, 16")
    k("s_lshl_b32 s55, s7, 12")
    k("s_add_u32 s54, s54, s55")
    k("s_add_u32 s55, s54, 32768")
    for a in range(2):
        for st in range(4):
            r = 104 + 16*a + 4*st
            k(f"buffer_store_dwordx4 v[{r}:{r+3}], v100, s[56:59], s{54+a} offen offset:{st*1024}")
    k("s_branch PA_WDONE")
    k("PA_S56:")
    k.srd(56, 4, 16*112*1024, WS_W2F)
    k("v_bfe_u32 v101, v0, 2, 2")
    k("v_lshrrev_b32 v102, 5, v0")
    k("v_lshl_add_u32 v102, v102, 2, v101")
    k("v_lshlrev_b32 v102, 8, v102")
    k("v_bfe_u32 v103, v0, 4, 1")
    k("v_lshl_add_u32 v102, v103, 5, v102")
    k("v_and_b32 v103, 3, v0")
    k("v_lshl_add_u32 v102, v103, 3, v102")
    k("s_sub_u32 s55, s3, 5")
    k("s_lshl_b32 s55, s55, 12")
    k(f"s_add_u32 s55, s55, {PA_W2}")
    k("v_add_u32 v102, s55, v102")
    for a in range(4):
        k(f"v_xor_b32 v103, {a}, v101")
        k(f"v_lshl_add_u32 v103, v103, 6, v102")
        k(f"ds_read_b64_tr_b16 v[{104+4*a}:{104+4*a+1}], v103")
        k(f"ds_read_b64_tr_b16 v[{104+4*a+2}:{104+4*a+3}], v103 offset:2048")
    k(f"s_mul_i32 s54, s7, {4*112*1024}")
    k("s_lshl_b32 s55, s6, 10")
    k("s_add_u32 s54, s54, s55")
    k("s_waitcnt lgkmcnt(0)")
    for a in range(4):
        k(f"buffer_store_dwordx4 v[{104+4*a}:{104+4*a+3}], v100, s[56:59], s54 offen")
        k(f"s_add_u32 s54, s54, {112*1024}")
    k("PA_WDONE:")
    k.stamp(6)
    k("s_cmp_ge_u32 s18, 4")
    k("s_cbranch_scc1 PA_NOMOD")
    k("v_lshlrev_b32 v50, 16, v16"); k("v_and_b32 v51, 0xffff0000, v16")
    k("v_lshlrev_b32 v52, 16, v17"); k("v_and_b32 v53, 0xffff0000, v17")
    k("s_mov_b32 s45, 0xbfb8aa3b")
    for i in range(4): k(f"v_mul_f32 v{60+i}, s45, v{50+i}")
    for i in range(4): k(f"v_exp_f32 v{60+i}, v{60+i}")
    k("s_nop 0")
    for i in range(4): k(f"v_add_f32 v{60+i}, 1.0, v{60+i}")
    for i in range(4): k(f"v_rcp_f32 v{60+i}, v{60+i}")
    k("s_nop 0")
    for i in range(4): k(f"v_mul_f32 v{60+i}, v{50+i}, v{60+i}")
    for i in range(4): k(f"v_cvt_pk_bf16_f32 v{70+i}, v{60+i}, v{60+i}")
    for i in range(4): k(f"v_and_b32 v{60+i}, 0xffff0000, v{70+i}")
    for i in range(4): k(f"v_and_b32 v{70+i}, 0xffff, v{70+i}")
    for c in range(8): k(f"v_mov_b32 v{80+c}, 0")
    for i in range(4):
        for j in range(4):
            k(f"v_dot2_f32_bf16 v{80+2*j}, v{20+4*i+j}, v{70+i}, v{80+2*j}")
            k(f"v_dot2_f32_bf16 v{81+2*j}, v{20+4*i+j}, v{60+i}, v{81+2*j}")
    k("s_nop 2")
    for c in range(8):
        k(f"v_add_f32_dpp v{80+c}, v{80+c}, v{80+c} row_ror:8 row_mask:0xf bank_mask:0xf")
    k("v_lshrrev_b32 v5, 4, v0")
    k("s_lshl_b32 s17, s16, 2")
    k("v_add_u32 v5, s17, v5")
    k("v_lshlrev_b32 v5, 8, v5")
    k("v_lshl_add_u32 v5, v1, 5, v5")
    k(f"v_add_u32 v5, {PA_MOD}, v5")
    k("v_and_b32 v6, 15, v0")
    k("v_cmp_gt_u32 vcc, 8, v6")
    k("s_and_saveexec_b64 s[46:47], vcc")
    k("ds_write_b128 v5, v[80:83]")
    k("ds_write_b128 v5, v[84:87] offset:16")
    k("s_mov_b64 exec, s[46:47]")
    k("s_waitcnt lgkmcnt(0)")
    k("PA_NOMOD:")
    k.stamp(7)
    k("s_barrier")
    k("s_cmp_ge_u32 s18, 4")
    k(f"s_cbranch_scc1 {END}")
    k("s_cmp_lg_u32 s3, 4")
    k(f"s_cbranch_scc1 {END}")
    k("v_lshlrev_b32 v5, 2, v0")
    for i in range(16):
        k(f"ds_read_b32 v{8+i}, v5 offset:{PA_MOD + i*256}")
        if i == 14: k("s_waitcnt lgkmcnt(0)")
    k("s_waitcnt lgkmcnt(0)")
    for st in [8, 4, 2, 1]:
        for i in range(st): k(f"v_add_f32 v{8+i}, v{8+i}, v{8+i+st}")
    k("s_mul_i32 s17, s18, 12288")
    k("s_lshl_b32 s20, s19, 8")
    k("s_add_u32 s17, s17, s20")
    k("buffer_store_dword v8, v5, s[40:43], s17 offen")

XR_BYTES = 4608
KC_STRIDE = 4160
CH_BYTES = XR_BYTES + 4*KC_STRIDE
RED_OFF = 2*CH_BYTES
PREP_OFF = RED_OFF + 16384
PB_LDS = PREP_OFF + 1024
def phase_b(k, END):
    k("s_cmp_ge_u32 s3, 4")
    k("s_cbranch_scc1 PB_PREP")
    k(f"s_load_dwordx4 s[8:11], s[0:1], {A_SSMK}")
    k("s_lshr_b32 s6, s3, 1")
    k("s_and_b32 s12, s3, 1")
    k("s_and_b32 s13, s2, 7")
    k("s_lshl_b32 s13, s13, 6")
    k("s_lshr_b32 s14, s2, 3")
    k("s_lshl_b32 s14, s14, 1")
    k("s_add_u32 s13, s13, s14")
    k("s_add_u32 s13, s13, s6")
    k("s_lshl_b32 s14, s13, 12")
    k(f"s_mul_i32 s15, s6, {CH_BYTES}")
    k("v_lshlrev_b32 v2, 4, v0")
    k("s_waitcnt lgkmcnt(0)")
    k.srd(28, 8, 0x200000)
    k(f"buffer_load_dwordx2 v[18:19], off, s[28:31], s14 {NT}")
    for ee in range(2):
        k(f"s_lshl_b32 s48, s12, 2")
        k(f"s_add_u32 s49, s14, s48")
        k(f"s_add_u32 s49, s49, {2+2*ee}")
        k(f"s_mul_i32 s50, s12, {2*KC_STRIDE}")
        k(f"s_add_u32 s50, s50, s15")
        k(f"s_add_u32 s50, s50, {XR_BYTES + ee*KC_STRIDE + 32}")
        k("s_mov_b32 m0, s50")
        k("s_nop 0")
        for c in range(4):
            k(f"buffer_load_dwordx4 v2, s[28:31], s49 offen offset:{c*1024} {NT} lds")
    k.srd(32, 4, 0x200000, WS_KVT)
    k("s_lshl_b32 s48, s12, 11")
    k("s_add_u32 s49, s14, s48")
    k("s_add_u32 s50, s15, s48")
    k("s_mov_b32 m0, s50")
    k("s_nop 0")
    k("buffer_load_dwordx4 v2, s[32:35], s49 offen lds")
    k("buffer_load_dwordx4 v2, s[32:35], s49 offen offset:1024 lds")
    k.srd(36, 4, 0x200000, WS_QT)
    k.srd(40, 4, 0x4000, WS_ST1)
    k.srd(44, 4, 0x200000, WS_X1T)
    k.srd(52, 10, 1024)
    k.srd(56, 4, 4*12288, WS_MODP)
    k("v_and_b32 v3, 15, v0")
    k("v_lshrrev_b32 v4, 4, v0")
    k("v_lshlrev_b32 v5, 4, v3")
    k("v_lshl_add_u32 v5, v4, 2, v5")
    k("s_lshl_b32 s48, s12, 10")
    k("v_add_u32 v5, s48, v5")
    k("v_lshlrev_b32 v6, 1, v5")
    k("v_lshlrev_b32 v7, 2, v5")
    QV, SV = 200, 208
    for i in range(4):
        k(f"buffer_load_dwordx2 v[{QV+2*i}:{QV+2*i+1}], v6, s[36:39], s14 offen offset:{i*512}")
    k("s_movk_i32 s51, 0x2000")
    for i in range(4):
        k(f"buffer_load_dwordx4 v[{SV+8*i}:{SV+8*i+3}], v7, s[40:43], 0 offen offset:{i*1024}")
        k(f"buffer_load_dwordx4 v[{SV+8*i+4}:{SV+8*i+7}], v7, s[40:43], s51 offen offset:{i*1024}")
    k("s_lshl_b32 s20, s13, 1")
    k(f"buffer_load_ushort v240, off, s[52:55], s20 {NT}")
    k("v_and_b32 v241, 3, v0")
    k("v_cmp_eq_u32 vcc, 3, v241")
    k("s_nop 1")
    k("v_addc_co_u32 v241, vcc, 0, v241, vcc")
    k("v_lshlrev_b32 v241, 11, v241")
    k("v_bfe_u32 v242, v0, 2, 2")
    k("v_mul_u32_u24 v242, 12288, v242")
    k("v_add_u32 v241, v241, v242")
    k("s_lshl_b32 s20, s13, 2")
    k("buffer_load_dword v241, v241, s[56:59], s20 offen")
    k.srd(8, 4, 0x200000, WS_X1S)
    for i in range(8, 12): k(f"v_mov_b32 v{i}, 0")
    k("v_lshlrev_b32 v12, 3, v0")
    k("s_add_u32 s48, s15, 4096")
    k("v_add_u32 v12, s48, v12")
    k("ds_write_b64 v12, v[8:9]")
    k("v_bfe_u32 v14, v0, 2, 2")
    k(f"v_mul_u32_u24 v14, {KC_STRIDE}, v14")
    k("v_and_b32 v15, 3, v0")
    k("v_lshl_add_u32 v14, v15, 3, v14")
    k("v_lshl_add_u32 v14, v4, 4, v14")
    k("s_lshl_b32 s48, s12, 8")
    k("s_add_u32 s48, s48, s15")
    k(f"s_add_u32 s49, s48, {XR_BYTES}")
    k("v_add_u32 v14, s49, v14")
    k("v_lshlrev_b32 v15, 4, v4")
    k("v_lshlrev_b32 v16, 5, v3")
    k("v_sub_u32 v15, v15, v16")
    k("s_add_u32 s49, s48, 480")
    k("v_add_u32 v15, s49, v15")
    ACC = 20; FA = [64, 128]; FB = [96, 160]
    for i in range(32): k(f"v_mov_b32 v{ACC+i}, 0")
    k("v_lshrrev_b32 v12, 1, v0")
    k(f"v_mul_u32_u24 v12, {KC_STRIDE}, v12")
    k("v_and_b32 v13, 1, v0")
    k("v_lshl_add_u32 v12, v13, 4, v12")
    k(f"s_mul_i32 s50, s12, {2*KC_STRIDE}")
    k("s_add_u32 s50, s50, s15")
    k(f"s_add_u32 s50, s50, {XR_BYTES}")
    k("v_add_u32 v12, s50, v12")
    k("s_waitcnt vmcnt(24)")
    k("v_lshlrev_b32 v52, 16, v18")
    k("v_alignbit_b32 v53, v19, v18, 16")
    k("v_cmp_eq_u32 vcc, 1, v0")
    k("s_cmp_eq_u32 s12, 0")
    k("s_cbranch_scc0 PB_FX1")
    k("v_cndmask_b32 v11, v18, v52, vcc")
    k("s_branch PB_FX2")
    k("PB_FX1:")
    k("v_cndmask_b32 v10, v18, v52, vcc")
    k("v_cndmask_b32 v11, v19, v53, vcc")
    k("PB_FX2:")
    k("v_cmp_eq_u32 vcc, 1, v13")
    k("s_nop 1")
    k("v_cndmask_b32 v10, 0, v10, vcc")
    k("v_cndmask_b32 v11, 0, v11, vcc")
    k("s_mov_b64 exec, 0xf")
    k("ds_write_b128 v12, v[8:11]")
    k("s_mov_b64 exec, -1")
    k.stamp(0)
    k("s_waitcnt vmcnt(14) lgkmcnt(0)")
    k("s_barrier")
    k.stamp(1)
    def loads(ph, st):
        out = []
        for tt in range(8):
            c = tt
            out.append(f"ds_read_b128 v[{FB[st]+4*c}:{FB[st]+4*c+3}], v15 offset:{3584-512*c+64*ph}")
            out.append(f"ds_read_b64_tr_b16 v[{FA[st]+4*tt}:{FA[st]+4*tt+1}], v14 offset:{64*ph+512*tt}")
            out.append(f"ds_read_b64_tr_b16 v[{FA[st]+4*tt+2}:{FA[st]+4*tt+3}], v14 offset:{64*ph+512*tt+8}")
        return out
    def mfmas(st):
        pairs = [(tt, c) for tt in range(8) for c in range(8-tt)]
        pairs.sort(key=lambda p: (max(p), p[0]))
        return [f"v_mfma_f32_16x16x32_bf16 v[{ACC+4*(tt+c)}:{ACC+4*(tt+c)+3}], v[{FA[st]+4*tt}:{FA[st]+4*tt+3}], v[{FB[st]+4*c}:{FB[st]+4*c+3}], v[{ACC+4*(tt+c)}:{ACC+4*(tt+c)+3}]" for tt, c in pairs], pairs
    for x in loads(0, 0): k(x)
    for ph in range(4):
        st = ph % 2
        ms, pairs = mfmas(st)
        ls = loads(ph+1, 1-st) if ph < 3 else []
        if ph > 0: k("s_waitcnt lgkmcnt(0)")
        li = 0; done = -1
        for i, m in enumerate(ms):
            if ph == 0:
                need = max(pairs[i])
                if need > done:
                    out = 24 + li - 3*(need+1)
                    k(f"s_waitcnt lgkmcnt({min(out,15)})")
                    done = need
            k(m)
            if li < len(ls) and (ph > 0 or i >= 8) and i < 34:
                k(ls[li]); li += 1
        while li < len(ls):
            k(ls[li]); li += 1
    k.stamp(2)
    k("s_lshl_b32 s48, s3, 12")
    k(f"s_add_u32 s48, s48, {RED_OFF}")
    k("v_add_u32 v16, s48, v2")
    k("s_xor_b32 s49, s3, 1")
    k("s_lshl_b32 s49, s49, 12")
    k(f"s_add_u32 s49, s49, {RED_OFF}")
    k("v_add_u32 v17, s49, v2")
    k("v_lshlrev_b32 v18, 1, v5")
    k("s_add_u32 s48, s15, 4088")
    k("v_sub_u32 v18, s48, v18")
    k("v_subrev_u32 v18, 1536, v18")
    for i in range(4):
        k(f"ds_read_b64 v[{80+2*i}:{80+2*i+1}], v18 offset:{(3-i)*512}")
    k("s_nop 3")
    k("s_cmp_eq_u32 s12, 0")
    k("s_cbranch_scc0 PB_H1")
    for i in range(4):
        k(f"ds_write_b128 v16, v[{ACC+16+4*i}:{ACC+16+4*i+3}] offset:{i*1024}")
    k("s_branch PB_HX")
    k("PB_H1:")
    for i in range(4):
        k(f"ds_write_b128 v16, v[{ACC+4*i}:{ACC+4*i+3}] offset:{i*1024}")
    k("s_waitcnt lgkmcnt(0)")
    for i in range(16): k(f"v_mov_b32 v{ACC+i}, v{ACC+16+i}")
    k("PB_HX:")
    k("s_waitcnt lgkmcnt(0)")
    k("s_barrier")
    for i in range(4):
        k(f"ds_read_b128 v[{64+4*i}:{64+4*i+3}], v17 offset:{i*1024}")
    k("s_waitcnt vmcnt(0)")
    k.stamp(3)
    k("v_lshlrev_b32 v240, 16, v240")
    k("v_add_f32_dpp v241, v241, v241 row_ror:4 row_mask:0xf bank_mask:0xf")
    k("s_nop 1")
    k("v_add_f32_dpp v241, v241, v241 row_ror:8 row_mask:0xf bank_mask:0xf")
    round_bf16(k, "v241", "v241")
    k("v_add_f32 v242, 1.0, v241")
    round_bf16(k, "v242", "v242")
    k("s_nop 0")
    k("v_readlane_b32 s52, v241, 0")
    k("v_readlane_b32 s53, v242, 1")
    k("v_readlane_b32 s54, v241, 2")
    k("v_readlane_b32 s55, v242, 3")
    k("v_mov_b32 v241, s52")
    for i in range(4):
        a = ACC + 4*i
        t = 100 + 16*i
        k(f"v_and_b32 v{t}, 0xffff0000, v{80+2*i+1}")
        k(f"v_lshlrev_b32 v{t+1}, 16, v{80+2*i+1}")
        k(f"v_and_b32 v{t+2}, 0xffff0000, v{80+2*i}")
        k(f"v_lshlrev_b32 v{t+3}, 16, v{80+2*i}")
        for j in range(4): k(f"v_fmac_f32 v{a+j}, v240, v{t+j}")
        k(f"v_lshlrev_b32 v{t+4}, 16, v{QV+2*i}")
        k(f"v_and_b32 v{t+5}, 0xffff0000, v{QV+2*i}")
        k(f"v_lshlrev_b32 v{t+6}, 16, v{QV+2*i+1}")
        k(f"v_and_b32 v{t+7}, 0xffff0000, v{QV+2*i+1}")
        for j in range(4): k(f"v_fma_f32 v{t+8+j}, v{t+4+j}, v{SV+8*i+j}, v{SV+8*i+4+j}")
        for j in range(4): k(f"v_fma_f32 v{t+8+j}, v{t+8+j}, s53, v241")
        for j in range(4): k(f"v_mul_f32 v{t+8+j}, s54, v{t+8+j}")
    k("s_waitcnt lgkmcnt(0)")
    for i in range(4):
        a = ACC + 4*i
        t = 100 + 16*i
        for j in range(4): k(f"v_add_f32 v{a+j}, v{a+j}, v{64+4*i+j}")
        for j in range(4): k(f"v_fma_f32 v{t+8+j}, v{t+8+j}, v{a+j}, v{t+4+j}")
        k(f"v_cvt_pk_bf16_f32 v{170+2*i}, v{t+8}, v{t+9}")
        k(f"v_cvt_pk_bf16_f32 v{170+2*i+1}, v{t+10}, v{t+11}")
        k(f"buffer_store_dwordx2 v[{170+2*i}:{170+2*i+1}], v6, s[44:47], s14 offen offset:{i*512}")
        k(f"v_lshlrev_b32 v{t}, 16, v{170+2*i}")
        k(f"v_and_b32 v{t+1}, 0xffff0000, v{170+2*i}")
        k(f"v_lshlrev_b32 v{t+2}, 16, v{170+2*i+1}")
        k(f"v_and_b32 v{t+3}, 0xffff0000, v{170+2*i+1}")
        for j in range(4): k(f"v_mul_f32 v{t+j}, s55, v{t+j}")
        k(f"v_cvt_pk_bf16_f32 v{180+2*i}, v{t}, v{t+1}")
        k(f"v_cvt_pk_bf16_f32 v{180+2*i+1}, v{t+2}, v{t+3}")
        k(f"buffer_store_dwordx2 v[{180+2*i}:{180+2*i+1}], v6, s[8:11], s14 offen offset:{i*512}")
    k.stamp(4)
    k(f"s_branch {END}")

    k("PB_PREP:")
    k("v_lshlrev_b32 v10, 4, v0")
    k("s_waitcnt lgkmcnt(0)")
    k.srd(20, 4, 56*32*1024, WS_W1F)
    k("s_cmp_eq_u32 s3, 4")
    k("s_cbranch_scc0 PB_PF")
    k("s_cmp_ge_u32 s2, 224")
    k("s_cbranch_scc1 PB_IDLE")
    k("s_lshr_b32 s6, s2, 2")
    k("s_and_b32 s7, s2, 3")
    k("v_lshrrev_b32 v4, 5, v0")
    k("v_lshlrev_b32 v9, 5, v4")
    k.srd(16, 4, 4*12288, WS_MODP)
    k.srd(24, 4, 0x10000, WS_UT)
    k("s_lshl_b32 s32, s6, 15")
    k("s_lshl_b32 s33, s7, 13")
    k("s_add_u32 s32, s32, s33")
    k("s_add_u32 s33, s32, 4096")
    for st in range(8):
        so = "s32" if st < 4 else "s33"
        k(f"buffer_load_dwordx4 v[{16+4*st}:{16+4*st+3}], v10, s[20:23], {so} offen offset:{(st%4)*1024}")
    k("v_lshlrev_b32 v8, 3, v0")
    k("s_lshl_b32 s29, s7, 9")
    k(f"s_add_u32 s30, s29, {2048*4}")
    k(f"s_add_u32 s31, s29, {1536*4}")
    for p in range(4):
        k(f"buffer_load_dwordx2 v[{64+2*p}:{65+2*p}], v8, s[16:19], s30 offen")
        k(f"buffer_load_dwordx2 v[{72+2*p}:{73+2*p}], v8, s[16:19], s31 offen")
        k("s_add_u32 s30, s30, 12288"); k("s_add_u32 s31, s31, 12288")
    for i in range(4): k(f"v_mov_b32 v{12+i}, 0")
    k("s_barrier")
    k("s_waitcnt vmcnt(0)")
    for b in (64, 72):
        for e in range(2):
            k(f"v_add_f32 v{b+e}, v{b+e}, v{b+2+e}"); k(f"v_add_f32 v{b+4+e}, v{b+4+e}, v{b+6+e}"); k(f"v_add_f32 v{b+e}, v{b+e}, v{b+4+e}")
            round_bf16(k, f"v{b+e}", f"v{b+e}")
    for e in range(2):
        k(f"v_add_f32 v{64+e}, 1.0, v{64+e}")
        round_bf16(k, f"v{64+e}", f"v{64+e}")
    k(f"v_add_u32 v8, {PREP_OFF}, v8")
    k("ds_write_b64 v8, v[64:65]")
    k("ds_write_b64 v8, v[72:73] offset:512")
    k(f"v_add_u32 v9, {PREP_OFF}, v9")
    k("s_waitcnt lgkmcnt(0)")
    for st in range(8):
        pb = 64 + 16*st
        k(f"ds_read_b128 v[{pb}:{pb+3}], v9 offset:{st*64}")
        k(f"ds_read_b128 v[{pb+4}:{pb+7}], v9 offset:{st*64+16}")
        k(f"ds_read_b128 v[{pb+8}:{pb+11}], v9 offset:{512+st*64}")
        k(f"ds_read_b128 v[{pb+12}:{pb+15}], v9 offset:{512+st*64+16}")
        if st % 3 == 2: k("s_waitcnt lgkmcnt(0)")
    k("s_waitcnt lgkmcnt(0)")
    for st in range(8):
        pb = 64 + 16*st
        for i in range(4):
            k(f"v_lshlrev_b32 v{48+2*i}, 16, v{16+4*st+i}")
            k(f"v_and_b32 v{49+2*i}, 0xffff0000, v{16+4*st+i}")
        for jx in range(8):
            k(f"v_fmac_f32 v{12+(jx&1)}, v{48+jx}, v{pb+jx}")
            k(f"v_fmac_f32 v{14+(jx&1)}, v{48+jx}, v{pb+8+jx}")
    k("v_add_f32 v12, v12, v13")
    k("v_add_f32 v13, v14, v15")
    k("v_mov_b32 v14, v12"); k("v_mov_b32 v15, v13")
    k("s_nop 1")
    k("v_permlane32_swap_b32 v12, v14")
    k("v_permlane32_swap_b32 v13, v15")
    k("s_nop 1")
    k("v_add_f32 v12, v12, v14")
    k("v_add_f32 v13, v13, v15")
    k("s_lshl_b32 s11, s7, 14")
    k("s_lshl_b32 s33, s6, 7")
    k("s_add_u32 s11, s11, s33")
    k("s_add_u32 s33, s11, 8192")
    k("v_lshlrev_b32 v14, 2, v0")
    k("s_mov_b32 exec_hi, 0")
    k("buffer_store_dword v12, v14, s[24:27], s11 offen")
    k("buffer_store_dword v13, v14, s[24:27], s33 offen")
    k("s_mov_b64 exec, -1")
    k("s_barrier")
    k(f"s_branch {END}")
    k("PB_PF:")
    k("s_cmp_lg_u32 s3, 7")
    k("s_cbranch_scc1 PB_NOZ")
    k("s_cmp_ge_u32 s2, 32")
    k("s_cbranch_scc1 PB_NOZ")
    k.srd(24, 4, 4096, WS_FLAG)
    k("s_lshl_b32 s6, s2, 7")
    k("v_mov_b32 v12, 0")
    k("s_mov_b64 exec, 1")
    k("buffer_store_dword v12, off, s[24:27], s6")
    k("s_mov_b64 exec, -1")
    k("PB_NOZ:")
    k("s_cmp_lg_u32 s3, 6")
    k("s_cbranch_scc1 PB_NOG")
    k("s_cmp_ge_u32 s2, 8")
    k("s_cbranch_scc1 PB_NOG")
    k.srd(16, 4, 4*12288, WS_MODP)
    k.srd(24, 4, 3072*4, WS_MOD)
    k("v_lshlrev_b32 v12, 2, v0")
    k("s_lshl_b32 s6, s2, 8")
    k(f"s_add_u32 s6, s6, {2560*4}")
    k("s_mov_b32 s7, s6")
    for p in range(4):
        k(f"buffer_load_dword v{13+p}, v12, s[16:19], s7 offen")
        k("s_add_u32 s7, s7, 12288")
    k("s_waitcnt vmcnt(0)")
    k("v_add_f32 v13, v13, v14"); k("v_add_f32 v15, v15, v16"); k("v_add_f32 v13, v13, v15")
    round_bf16(k, "v13", "v13")
    k("buffer_store_dword v13, v12, s[24:27], s6 offen")
    k("PB_NOG:")
    k("s_barrier")
    if PB_PREF:
        k("s_lshr_b32 s6, s2, 3")
        k(f"s_mul_i32 s6, s6, {56*1024}")
        k("s_sub_u32 s7, s3, 5")
        k(f"s_mul_i32 s7, s7, {19*1024}")
        k("s_add_u32 s6, s6, s7")
        for i in range(19):
            k(f"buffer_load_dwordx4 v[{16+4*i}:{19+4*i}], v10, s[20:23], s6 offen")
            k("s_add_u32 s6, s6, 1024")
        k("s_waitcnt vmcnt(0)")
    k("s_barrier")
    k(f"s_branch {END}")
    k("PB_IDLE:")
    k("s_barrier")
    k("s_barrier")

PC_STAT = 65536
PC_UT = PC_STAT + 8192
PC_LDS = PC_UT + 2048
def x_dma_setup(k, rt_sgpr):
    k("v_lshrrev_b32 v2, 3, v0")
    k("v_and_b32 v3, 7, v0")
    k("v_bfe_u32 v4, v0, 4, 1")
    k("v_lshlrev_b32 v4, 2, v4")
    k("v_xor_b32 v3, v3, v4")
    k("v_lshlrev_b32 v3, 4, v3")
    k("v_lshl_add_u32 v3, v2, 12, v3")
    k(f"s_lshl_b32 s14, {rt_sgpr}, 7")
    k("v_add_u32 v3, s14, v3")
def x_frag_addr(k):
    k("v_bfe_u32 v5, v0, 2, 2")
    k("v_and_b32 v6, 3, v0")
    k("v_bfe_u32 v7, v0, 4, 1")
    k("v_lshrrev_b32 v12, 5, v0")
    k("v_lshlrev_b32 v13, 3, v12")
    k("v_add_u32 v13, v13, v5")
    k("v_lshlrev_b32 v13, 7, v13")
    k("v_lshl_add_u32 v13, v7, 5, v13")
    k("v_lshl_add_u32 v13, v6, 3, v13")
    k("v_lshrrev_b32 v14, 1, v5")
    k("s_lshr_b32 s15, s3, 2")
    k("v_xor_b32 v14, s15, v14")
    k("v_lshl_add_u32 v8, v14, 6, v13")
    k("v_xor_b32 v9, 64, v8")

def phase_c(k, END):
    k("s_cmp_ge_u32 s2, 224")
    k("s_cbranch_scc1 PC_HELP")
    k("s_and_b32 s11, s2, 31")
    k("s_lshr_b32 s12, s2, 5")
    k("s_lshl_b32 s13, s12, 3")
    k("s_add_u32 s13, s13, s3")
    x_dma_setup(k, "s11")
    k("v_lshlrev_b32 v4, 4, v0")
    k("s_lshl_b32 s36, s3, 15")
    k("s_lshl_b32 s37, s3, 10")
    k("s_lshl_b32 s38, s13, 15")
    k("s_and_b32 s15, s3, 3")
    k("s_lshl_b32 s15, s15, 8")
    k("s_lshl_b32 s40, s12, 10")
    k("s_add_u32 s15, s15, s40")
    k("s_lshr_b32 s40, s3, 2")
    k("s_lshl_b32 s40, s40, 13")
    k("s_add_u32 s15, s15, s40")
    k("v_lshlrev_b32 v10, 2, v0")
    k("s_waitcnt lgkmcnt(0)")
    k.srd(16, 4, 0x200000, WS_X1S)
    k.srd(20, 4, 56*32*1024, WS_W1F)
    k.srd(24, 4, 0x10000, WS_UT)
    WF = 128
    seq = []
    def dma(g):
        k("s_mov_b32 m0, s37")
        k("s_add_u32 s37, s37, 8192")
        k("buffer_load_dwordx4 v3, s[16:19], s36 offen lds")
        k("s_add_u32 s36, s36, 0x40000")
        seq.append(("D", g))
    def wld(kk):
        k(f"buffer_load_dwordx4 v[{WF+4*kk}:{WF+4*kk+3}], v4, s[20:23], s38 offen offset:{(kk%4)*1024}")
        if kk % 4 == 3: k("s_add_u32 s38, s38, 4096")
        seq.append(("W", kk))
    def after(item):
        return len(seq) - 1 - seq.index(item)
    AH = K2_AH
    dma(0)
    for kk in range(0, 4): wld(kk)
    dma(1)
    for kk in range(4, 8): wld(kk)
    dma(2); dma(3)
    for dq in range(4):
        k(f"buffer_load_dword v{96+dq}, v10, s[24:27], s15 offen"); seq.append(("U", dq))
        k("s_add_u32 s15, s15, 16384")
    for kk in range(8, AH): wld(kk)
    for g in range(4, 8): dma(g)
    k.srd(28, 4, 64*112*1024, WS_HID)
    k.srd(32, 4, 2048*8, WS_ST2)
    k.srd(48, 4, 4096, WS_FLAG)
    k.srd(44, 4, 16*112*1024, WS_W2F)
    k.stamp(0)
    x_frag_addr(k)
    ACC = 64
    XF = [16, 24, 32]
    for i in range(32): k(f"v_mov_b32 v{ACC+i}, 0")
    def xloads(kk):
        st = kk % 3
        out = []
        for bp in range(2):
            out.append(f"ds_read_b64_tr_b16 v[{XF[st]+4*bp}:{XF[st]+4*bp+1}], v{8+bp} offset:{kk*2048}")
            out.append(f"ds_read_b64_tr_b16 v[{XF[st]+4*bp+2}:{XF[st]+4*bp+3}], v{8+bp} offset:{kk*2048+512}")
        return out
    k(f"s_waitcnt vmcnt({after(('W',0))})")
    k("s_barrier")
    k.stamp(1)
    for x in xloads(0): k(x)
    for x in xloads(1): k(x)
    for kk in range(32):
        st = kk % 3
        need = [("W", kk)]
        bar = None
        if kk == 2: bar = ("D", 1)
        if kk == 6: bar = ("D", 3)
        if kk == 14: bar = ("D", 7)
        cnt = after(("W", kk))
        if bar: cnt = min(cnt, after(bar))
        k(f"s_waitcnt vmcnt({cnt}) lgkmcnt({4 if kk < 31 else 0})")
        if kk == 10:
            k("v_add_f32 v96, v96, v97"); k("v_add_f32 v98, v98, v99"); k("v_add_f32 v96, v96, v98")
            k("s_lshl_b32 s15, s3, 8")
            k(f"s_add_u32 s15, s15, {PC_UT}")
            k("v_add_u32 v97, s15, v10")
            k("ds_write_b32 v97, v96")
            k("s_waitcnt lgkmcnt(0)")
        if bar: k("s_barrier")
        if kk % 4 == 0 and kk > 0: k.stamp(1 + kk//4)
        nxt = xloads(kk+2) if kk+2 < 32 else []
        for bp in range(2):
            k(f"v_mfma_f32_32x32x16_bf16 v[{ACC+16*bp}:{ACC+16*bp+15}], v[{WF+4*kk}:{WF+4*kk+3}], v[{XF[st]+4*bp}:{XF[st]+4*bp+3}], v[{ACC+16*bp}:{ACC+16*bp+15}]")
            for x in nxt[2*bp:2*bp+2]: k(x)
        if kk + AH < 32: wld(kk + AH)
        if kk == 32 - AH:
            k("s_lshl_b32 s15, s11, 7")
            k("buffer_load_dword v100, off, s[48:51], s15 sc1"); seq.append(("F", 0))
        if kk == 32 - AH + 5:
            k(f"s_waitcnt vmcnt({after(('F',0))})")
            k("PC_POLL:")
            k("v_readfirstlane_b32 s41, v100")
            k("s_cmp_lg_u32 s41, 0")
            k("s_cbranch_scc1 PC_GOT")
            k("s_sleep 8")
            k("buffer_load_dword v100, off, s[48:51], s15 sc1")
            k("s_waitcnt vmcnt(0)")
            k("s_branch PC_POLL")
            k("PC_GOT:")
            k("v_and_b32 v15, 31, v0")
            k("s_lshl_b32 s15, s11, 6")
            k("s_lshr_b32 s41, s3, 2")
            k("s_lshl_b32 s41, s41, 5")
            k("s_add_u32 s15, s15, s41")
            k("v_add_u32 v15, s15, v15")
            k("v_lshlrev_b32 v15, 3, v15")
            k("v_xor_b32 v11, 0x100, v15")
            k("buffer_load_dwordx2 v[104:105], v15, s[32:35], 0 offen sc1"); seq.append(("S", 0))
            k("buffer_load_dwordx2 v[106:107], v11, s[32:35], 0 offen sc1"); seq.append(("S", 1))
            if PC_PREF:
                k("s_lshr_b32 s15, s2, 3")
                k("s_lshl_b32 s15, s15, 16")
                k("s_lshl_b32 s41, s3, 13")
                k("s_add_u32 s15, s15, s41")
                for i in range(8):
                    k(f"buffer_load_dwordx4 v[{108+4*(i%4)}:{111+4*(i%4)}], v4, s[44:47], s15 offen offset:{(i%4)*1024}"); seq.append(("P", i))
                    if i == 3: k("s_add_u32 s15, s15, 4096")
    k.stamp(9)
    k("s_lshl_b32 s15, s3, 7")
    k(f"s_add_u32 s15, s15, {PC_UT}")
    k("v_lshlrev_b32 v14, 4, v12")
    k("v_add_u32 v14, s15, v14")
    for g in range(4):
        k(f"ds_read_b128 v[{160+4*g}:{160+4*g+3}], v14 offset:{g*32}")
        k(f"ds_read_b128 v[{176+4*g}:{176+4*g+3}], v14 offset:{1024+g*32}")
    k(f"s_waitcnt vmcnt({after(('S',1))}) lgkmcnt(0)")
    k.stamp(10)
    for bp in range(2):
        a = ACC + 16*bp
        rs, mn = 104+2*bp, 105+2*bp
        for i in range(16): k(f"v_fma_f32 v{a+i}, -v{mn}, v{160+i}, v{a+i}")
        for i in range(16): k(f"v_fma_f32 v{a+i}, v{a+i}, v{rs}, v{176+i}")
        o = 200 + 8*bp
        for i in range(8): k(f"v_cvt_pk_bf16_f32 v{o+i}, v{a+2*i}, v{a+2*i+1}")
        for i in range(8): k(f"v_pk_max_i16 v{o+i}, v{o+i}, 0")
        k("s_lshr_b32 s15, s3, 2")
        k(f"s_xor_b32 s15, s15, {bp}")
        k("s_lshl_b32 s41, s11, 1")
        k("s_add_u32 s15, s15, s41")
        k(f"s_mul_i32 s15, s15, {112*1024}")
        k("s_lshl_b32 s41, s13, 11")
        k("s_add_u32 s15, s15, s41")
        k(f"buffer_store_dwordx4 v[{o}:{o+3}], v4, s[28:31], s15 offen")
        k(f"buffer_store_dwordx4 v[{o+4}:{o+7}], v4, s[28:31], s15 offen offset:1024")
    k(f"s_branch {END}")

    k("PC_HELP:")
    k("s_sub_u32 s11, s2, 224")
    x_dma_setup(k, "s11")
    k("s_lshl_b32 s36, s3, 15")
    k("s_lshl_b32 s37, s3, 10")
    k("s_waitcnt lgkmcnt(0)")
    k.srd(16, 4, 0x200000, WS_X1T)
    for g in range(8):
        k("s_mov_b32 m0, s37")
        k("s_add_u32 s37, s37, 8192")
        k("buffer_load_dwordx4 v3, s[16:19], s36 offen lds")
        k("s_add_u32 s36, s36, 0x40000")
    k.srd(32, 4, 0x200000, WS_X1R)
    k.srd(20, 4, 2048*8, WS_ST2)
    k.srd(48, 4, 4096, WS_FLAG)
    x_frag_addr(k)
    k("s_lshl_b32 s15, s3, 13")
    k("v_add_u32 v46, s15, v8")
    k("v_add_u32 v47, s15, v9")
    k("v_and_b32 v54, 31, v0")
    k("v_lshlrev_b32 v54, 3, v54")
    k("v_lshl_add_u32 v54, v12, 9, v54")
    k("s_lshl_b32 s15, s11, 1")
    k("s_lshr_b32 s41, s3, 2")
    k("s_add_u32 s15, s15, s41")
    k("s_lshl_b32 s15, s15, 15")
    k("s_lshl_b32 s41, s3, 12")
    k("s_add_u32 s15, s15, s41")
    k("s_xor_b32 s45, s15, 0x8000")
    k("s_mov_b32 s44, 0x3f803f80")
    for i in range(8): k(f"v_mov_b32 v{60+i}, 0")
    k("s_waitcnt vmcnt(0)")
    k("s_barrier")
    for bp in range(2):
        for s in range(4):
            r = 128 + 16*bp + 4*s
            k(f"ds_read_b64_tr_b16 v[{r}:{r+1}], v{46+bp} offset:{s*2048}")
            k(f"ds_read_b64_tr_b16 v[{r+2}:{r+3}], v{46+bp} offset:{s*2048+512}")
        k("s_waitcnt lgkmcnt(0)")
    for bp in range(2):
        for j in range(16):
            r = 128 + 16*bp + j
            k(f"v_dot2_f32_bf16 v{60+4*bp+(j&1)}, v{r}, s44, v{60+4*bp+(j&1)}")
            k(f"v_dot2_f32_bf16 v{62+4*bp+(j&1)}, v{r}, v{r}, v{62+4*bp+(j&1)}")
    k("s_nop 2")
    for bp in range(2):
        k(f"v_add_f32 v{70+2*bp}, v{60+4*bp}, v{61+4*bp}")
        k(f"v_add_f32 v{71+2*bp}, v{62+4*bp}, v{63+4*bp}")
    k("v_lshlrev_b32 v15, 3, v0")
    k("s_lshr_b32 s41, s3, 2")
    k("s_lshl_b32 s41, s41, 12")
    k("s_lshl_b32 s42, s3, 9")
    k("s_add_u32 s41, s41, s42")
    k(f"s_add_u32 s41, s41, {PC_STAT}")
    k("v_add_u32 v48, s41, v15")
    k("v_xor_b32 v49, 0x1000, v48")
    k("ds_write_b64 v48, v[70:71]")
    k("ds_write_b64 v49, v[72:73]")
    k("s_waitcnt lgkmcnt(0)")
    k("s_barrier")
    k("s_cmp_eq_u32 s3, 0")
    k("s_cbranch_scc1 PC_H0")
    k("PC_HX:")
    for bp in range(2):
        so = "s15" if bp == 0 else "s45"
        for s in range(4):
            r = 128 + 16*bp + 4*s
            off = (s//2)*2048 + (s%2)*1024
            k(f"buffer_store_dwordx2 v[{r}:{r+1}], v54, s[32:35], {so} offen offset:{off}")
            k(f"buffer_store_dwordx2 v[{r+2}:{r+3}], v54, s[32:35], {so} offen offset:{off+256}")
    k(f"s_branch {END}")
    k("PC_H0:")
    k("v_lshrrev_b32 v13, 5, v0")
    k("v_and_b32 v14, 31, v0")
    k("v_lshlrev_b32 v13, 12, v13")
    k("v_lshl_add_u32 v13, v14, 3, v13")
    k(f"v_add_u32 v13, {PC_STAT}, v13")
    for j in range(16):
        k(f"ds_read_b64 v[{16+2*j}:{17+2*j}], v13 offset:{j*256}")
        if j == 14: k("s_waitcnt lgkmcnt(0)")
    k("s_waitcnt lgkmcnt(0)")
    for st in [8, 4, 2, 1]:
        for j in range(st):
            k(f"v_add_f32 v{16+2*j}, v{16+2*j}, v{16+2*(j+st)}")
            k(f"v_add_f32 v{17+2*j}, v{17+2*j}, v{17+2*(j+st)}")
    ln_finish(k, "v16", "v17", "v18", "v19", ["v20", "v21"])
    k("s_lshl_b32 s16, s11, 9")
    k("v_lshlrev_b32 v13, 3, v0")
    k("buffer_store_dwordx2 v[18:19], v13, s[20:23], s16 offen sc1")
    k("s_waitcnt vmcnt(0)")
    k("s_lshl_b32 s16, s11, 7")
    k("v_mov_b32 v13, 1")
    k("s_mov_b64 exec, 1")
    k("buffer_store_dword v13, off, s[48:51], s16 sc1")
    k("s_mov_b64 exec, -1")
    k("s_branch PC_HX")

PD_OUT = 4*3*4096
PD_LDS = PD_OUT + 8192
def phase_d(k, END):
    k("s_cmp_ge_u32 s3, 4")
    k("s_cbranch_scc1 PD_IDLE")
    k(f"s_load_dwordx2 s[6:7], s[0:1], {A_OUT}")
    k("s_and_b32 s11, s2, 31")
    k("s_lshr_b32 s12, s2, 5")
    k("v_lshlrev_b32 v2, 4, v0")
    k(f"s_mul_i32 s13, s12, {2*112*1024}")
    k("v_add_u32 v3, s13, v2")
    k(f"v_add_u32 v4, {112*1024}, v3")
    k(f"s_mul_i32 s13, s11, {2*112*1024}")
    k("v_add_u32 v5, s13, v2")
    k(f"v_add_u32 v6, {112*1024}, v5")
    k(f"s_mul_i32 s14, s3, {28*1024}")
    k("s_waitcnt lgkmcnt(0)")
    k.srd(16, 4, 16*112*1024, WS_W2F)
    k.srd(20, 4, 64*112*1024, WS_HID)
    ACC = 16; RING = 80; P = K3_P
    def issue(step):
        sl = RING + 16*(step % P)
        k(f"buffer_load_dwordx4 v[{sl}:{sl+3}], v3, s[16:19], s14 offen")
        k(f"buffer_load_dwordx4 v[{sl+8}:{sl+11}], v5, s[20:23], s14 offen")
        k(f"buffer_load_dwordx4 v[{sl+4}:{sl+7}], v4, s[16:19], s14 offen")
        k(f"buffer_load_dwordx4 v[{sl+12}:{sl+15}], v6, s[20:23], s14 offen")
        k("s_add_u32 s14, s14, 1024")
    for s in range(2): issue(s)
    k.srd(24, 4, 0x200000, WS_X1R)
    k.srd(28, 6, 0x200000)
    k.srd(32, 4, 3072*4, WS_MOD)
    k("s_lshr_b32 s15, s3, 1")
    k("s_and_b32 s36, s3, 1")
    k("v_and_b32 v7, 31, v0")
    k("v_lshrrev_b32 v8, 5, v0")
    k("s_lshl_b32 s37, s11, 1")
    k("s_add_u32 s37, s37, s36")
    k("s_lshl_b32 s37, s37, 15")
    k("s_lshl_b32 s38, s12, 1")
    k("s_add_u32 s38, s38, s15")
    k("s_lshl_b32 s39, s38, 11")
    k("s_add_u32 s37, s37, s39")
    k("v_lshlrev_b32 v10, 3, v0")
    for g in range(4):
        k(f"buffer_load_dwordx2 v[{208+2*g}:{208+2*g+1}], v10, s[24:27], s37 offen offset:{g*512}")
    k("v_lshlrev_b32 v9, 4, v8")
    k("s_lshl_b32 s38, s38, 7")
    k(f"s_add_u32 s38, s38, {2560*4}")
    for g in range(4):
        k(f"buffer_load_dwordx4 v[{216+4*g}:{216+4*g+3}], v9, s[32:35], s38 offen offset:{g*32}")
    for s in range(2, P): issue(s)
    k.stamp(0)
    for i in range(64): k(f"v_mov_b32 v{ACC+i}, 0")
    for s in range(28):
        inflight = min(P, 28 - s)
        k(f"s_waitcnt vmcnt({4*(inflight-1) + (8 if s < 2 else 0)})")
        if s == 0: k.stamp(1)
        sl = RING + 16*(s % P)
        for a in range(2):
            for b in range(2):
                c = ACC + 16*(a*2+b)
                k(f"v_mfma_f32_32x32x16_bf16 v[{c}:{c+15}], v[{sl+4*a}:{sl+4*a+3}], v[{sl+8+4*b}:{sl+8+4*b+3}], v[{c}:{c+15}]")
        if s + P < 28: issue(s + P)
    k.stamp(2)
    k(f"s_mul_i32 s39, s3, {3*4096}")
    k("v_add_u32 v11, s39, v2")
    for t in range(4):
        k(f"s_sub_u32 s39, s3, {t+1}")
        k("s_and_b32 s39, s39, 3")
        k(f"s_add_u32 s39, s39, {3*t}")
        k("s_lshl_b32 s39, s39, 12")
        k(f"v_add_u32 v{12+t}, s39, v2")
    for t in range(4):
        k(f"s_cmp_eq_u32 s3, {t}")
        k(f"s_cbranch_scc1 PD_SKIP{t}")
        for qd in range(4):
            k(f"ds_write_b128 v{12+t}, v[{ACC+16*t+4*qd}:{ACC+16*t+4*qd+3}] offset:{qd*1024}")
        k(f"PD_SKIP{t}:")
    for t in range(4):
        k(f"s_cmp_eq_u32 s3, {t}")
        k(f"s_cbranch_scc0 PD_MV{t}")
        for i in range(16): k(f"v_mov_b32 v{80+i}, v{ACC+16*t+i}")
        k(f"PD_MV{t}:")
    for g in range(4):
        k(f"v_lshlrev_b32 v{150+4*g}, 16, v{208+2*g}")
        k(f"v_and_b32 v{151+4*g}, 0xffff0000, v{208+2*g}")
        k(f"v_lshlrev_b32 v{152+4*g}, 16, v{208+2*g+1}")
        k(f"v_and_b32 v{153+4*g}, 0xffff0000, v{208+2*g+1}")
    k("s_waitcnt lgkmcnt(0)")
    k("s_barrier")
    for sidx in range(3):
        for qd in range(4):
            r = 96 + 16*sidx + 4*qd
            k(f"ds_read_b128 v[{r}:{r+3}], v11 offset:{sidx*4096+qd*1024}")
    for sidx in range(3):
        k(f"s_waitcnt lgkmcnt({8-4*sidx})")
        for i in range(16): k(f"v_add_f32 v{80+i}, v{80+i}, v{96+16*sidx+i}")
    k.stamp(3)
    k("s_lshl_b32 s39, s36, 5")
    k("v_add_u32 v13, s39, v7")
    k("v_and_b32 v14, 7, v13")
    k("s_lshl_b32 s39, s15, 2")
    k("v_xor_b32 v14, s39, v14")
    k("v_lshlrev_b32 v13, 7, v13")
    k("v_lshl_add_u32 v13, v8, 3, v13")
    k(f"v_add_u32 v13, {PD_OUT}, v13")
    for g in range(4):
        for r in range(4):
            k(f"v_fma_f32 v{150+4*g+r}, v{80+4*g+r}, v{216+4*g+r}, v{150+4*g+r}")
        k(f"v_cvt_pk_bf16_f32 v{170+2*g}, v{150+4*g}, v{151+4*g}")
        k(f"v_cvt_pk_bf16_f32 v{170+2*g+1}, v{152+4*g}, v{153+4*g}")
        k(f"v_xor_b32 v15, {g}, v14")
        k("v_lshl_add_u32 v15, v15, 4, v13")
        k(f"ds_write_b64 v15, v[{170+2*g}:{170+2*g+1}]")
    k("v_lshrrev_b32 v13, 3, v0")
    k("s_lshl_b32 s39, s3, 4")
    k("v_add_u32 v13, s39, v13")
    k("v_and_b32 v14, 7, v0")
    k("v_and_b32 v15, 7, v13")
    k("v_xor_b32 v15, v14, v15")
    k("v_lshlrev_b32 v15, 4, v15")
    k("v_lshl_add_u32 v15, v13, 7, v15")
    k(f"v_add_u32 v15, {PD_OUT}, v15")
    k("s_lshl_b32 s39, s11, 6")
    k("v_add_u32 v13, s39, v13")
    k("v_lshlrev_b32 v13, 10, v13")
    k("v_lshl_add_u32 v13, v14, 4, v13")
    k("s_lshl_b32 s39, s12, 7")
    k("s_add_u32 s40, s39, 8192")
    k("s_waitcnt lgkmcnt(0)")
    k("s_barrier")
    k("ds_read_b128 v[80:83], v15")
    k("ds_read_b128 v[84:87], v15 offset:1024")
    k("s_waitcnt lgkmcnt(0)")
    k("buffer_store_dwordx4 v[80:83], v13, s[28:31], s39 offen")
    k("buffer_store_dwordx4 v[84:87], v13, s[28:31], s40 offen")
    k(f"s_branch {END}")
    k("PD_IDLE:")
    k("s_barrier")
    k("s_barrier")

def gen_kernel(name, phase, tag, vgpr, first=False, last=False):
    k = K()
    header(k, name)
    END = f"{tag}_END"
    entry(k, END, first)
    phase(k, END)
    k(f"{END}:")
    k("s_endpgm")
    if last: k("CODE_END:")
    return k.text() + kd(name, vgpr)

def add_prof(text, name, idx):
    out = []
    for ln in text.split("\n"):
        st = ln.strip()
        if st == name + ":":
            out.append(ln)
            out.append("    s_memrealtime s[88:89]")
            out.append("    s_memtime s[84:85]")
            out.append("    s_load_dwordx2 s[92:93], s[0:1], %d" % A_WS)
            out.append("    v_readfirstlane_b32 s94, v0")
            out.append("    s_mov_b32 s95, s2")
            out.append("    s_waitcnt lgkmcnt(0)")
        elif st == "s_endpgm":
            out.append("    s_branch PROF_EXIT_%d" % idx)
        elif st.startswith(";STAMP"):
            i = int(st.split()[1])
            out.append("    s_memrealtime s[%d:%d]" % (60+2*i, 61+2*i))
        elif st.startswith(".section .rodata"):
            out.append("PROF_EXIT_%d:" % idx)
            out.append("    s_waitcnt vmcnt(0) lgkmcnt(0)")
            out.append("    s_memrealtime s[90:91]")
            out.append("    s_memtime s[86:87]")
            out.append("    s_waitcnt lgkmcnt(0)")
            out.append("    s_sub_u32 s59, s86, s84")
            out.append("    s_mov_b64 exec, 1")
            out.append("    s_lshr_b32 s94, s94, 6")
            out.append("    s_lshl_b32 s95, s95, 3")
            out.append("    s_add_u32 s94, s94, s95")
            out.append("    s_lshl_b32 s94, s94, 6")
            out.append("    s_add_u32 s94, s94, %d" % (WS_PROF + idx*0x40000))
            out.append("    s_add_u32 s84, s92, s94")
            out.append("    s_addc_u32 s85, s93, 0")
            out.append("    s_mov_b32 s86, 64")
            out.append("    s_mov_b32 s87, 0x20000")
            out.append("    v_mov_b32 v0, s88")
            out.append("    v_mov_b32 v1, s90")
            out.append("    v_mov_b32 v2, 0")
            out.append("    buffer_store_dwordx2 v[0:1], v2, s[84:87], 0 offen")
            for i in range(12):
                out.append("    v_mov_b32 v0, s%d" % (60+2*i))
                out.append("    buffer_store_dword v0, v2, s[84:87], 0 offen offset:%d" % (8+4*i))
                out.append("    s_nop 1")
            out.append("    v_mov_b32 v0, s59")
            out.append("    buffer_store_dword v0, v2, s[84:87], 0 offen offset:56")
            out.append("    s_waitcnt vmcnt(0)")
            out.append("    s_endpgm")
            out.append(ln)
        else:
            out.append(ln)
    return "\n".join(out)

HEADER_COMMENTS = """; adaLN + H3 long-conv + FFN (generated by dev/gen2.py)
"""
BLK = {"prep_kernel":512, "conv_kernel":512, "gemm1_kernel":512, "gemm2_kernel":512}
def build(prof=False):
    names = ["prep_kernel", "conv_kernel", "gemm1_kernel", "gemm2_kernel"]
    grids = [256, 256, 256, 256]
    ldss = [PA_LDS, PB_LDS, PC_LDS, PD_LDS]
    s = HEADER_COMMENTS
    for n, g, l in zip(names, grids, ldss):
        s += f"; @launch kernel={n} grid=({g},1,1) block=({BLK[n]},1,1) lds={l}\n"
    s += '.amdgcn_target "amdgcn-amd-amdhsa--gfx950"\n.text\n'
    parts = [gen_kernel(names[0], phase_a, "PA", 144, first=True), gen_kernel(names[1], phase_b, "PB", 248),
             gen_kernel(names[2], phase_c, "PC", 256), gen_kernel(names[3], phase_d, "PD", 240, last=True)]
    if prof: parts = [add_prof(p, n, i) for i, (p, n) in enumerate(zip(parts, names))]
    s += "".join(parts)
    return s, list(zip(names, grids, ldss))

if __name__ == "__main__":
    s, _ = build()
    out = sys.argv[1] if len(sys.argv) > 1 else f"cdna_kernels/{NAME}.s"
    open(out, "w").write(s)
    print("wrote", out, len(s), "bytes")
```

```python
import importlib, gen2 as gen
def kern(name, body, vg=32):
    k = gen.K(); gen.header(k, name); k(body); k("s_endpgm")
    return k.text() + gen.kd(name, vg)
def variant(fname, extra_launch_begin, extra_launch_end, kernels, **opts):
    importlib.reload(gen)
    for a, b in opts.items(): setattr(gen, a, b)
    s, _ = gen.build()
    lines = s.split("\n")
    idx = [i for i,x in enumerate(lines) if x.startswith("; @launch")]
    lines[idx[-1]+1:idx[-1]+1] = extra_launch_end
    lines[idx[0]:idx[0]] = extra_launch_begin
    open(f"cdna_kernels/{fname}.s","w").write("\n".join(lines) + kernels)
spin_cyc = kern("spinc_kernel", """
s_memtime s[4:5]
s_waitcnt lgkmcnt(0)
SPC:
s_memtime s[6:7]
s_waitcnt lgkmcnt(0)
s_sub_u32 s8, s6, s4
s_cmp_lt_u32 s8, 24000
s_cbranch_scc1 SPC
""")
spin_rt = kern("spinr_kernel", """
s_memrealtime s[4:5]
s_waitcnt lgkmcnt(0)
SPR:
s_memrealtime s[6:7]
s_waitcnt lgkmcnt(0)
s_sub_u32 s8, s6, s4
s_cmp_lt_u32 s8, 1000
s_cbranch_scc1 SPR
""")
empty = kern("empty_kernel", "")
base = dict(NT="", CODE_PF=0, PB_PREF=0, PC_PREF=0)
variant("p_base", [], [], "", **base)
variant("p_empty", [], ["; @launch kernel=empty_kernel grid=(1,1,1) block=(64,1,1) lds=0"], empty, **base)
variant("p_spinc_end", [], ["; @launch kernel=spinc_kernel grid=(1,1,1) block=(64,1,1) lds=0"], spin_cyc, **base)
variant("p_spinc_beg", ["; @launch kernel=spinc_kernel grid=(1,1,1) block=(64,1,1) lds=0"], [], spin_cyc, **base)
variant("p_spinr_end", [], ["; @launch kernel=spinr_kernel grid=(1,1,1) block=(64,1,1) lds=0"], spin_rt, **base)
```

```python
import importlib, gen2 as gen, sys
A_DBG = gen.A_DBG
def instr(text, name, idx):
    out = []
    for ln in text.split("\n"):
        st = ln.strip()
        if st == name + ":":
            out.append(ln)
            out.append("    s_memrealtime s[88:89]")
            out.append("    s_load_dwordx2 s[92:93], s[0:1], %d" % A_DBG)
        elif st == "s_endpgm":
            out.append("    s_branch ST_EXIT_%d" % idx)
        elif st.startswith(".section .rodata"):
            out.append("ST_EXIT_%d:" % idx)
            out.append("    s_waitcnt vmcnt(0) lgkmcnt(0)")
            out.append("    s_memrealtime s[90:91]")
            out.append("    s_sub_u32 s84, s92, %d" % (512*idx))
            out.append("    s_subb_u32 s85, s93, 0")
            out.append("    s_mov_b32 s86, 256")
            out.append("    s_mov_b32 s87, 0x20000")
            out.append("    s_waitcnt lgkmcnt(0)")
            out.append("    s_mov_b64 exec, 1")
            out.append("    s_not_b32 s88, s88")
            out.append("    v_mov_b32 v0, s88")
            out.append("    v_mov_b32 v1, s90")
            out.append("    v_mov_b32 v2, 0")
            out.append("    buffer_atomic_umax v0, v2, s[84:87], 0 offen offset:%d" % (8*idx))
            out.append("    buffer_atomic_umax v1, v2, s[84:87], 0 offen offset:%d" % (8*idx+4))
            out.append("    s_waitcnt vmcnt(0)")
            out.append("    s_endpgm")
            out.append(ln)
        else: out.append(ln)
    return "\n".join(out)
def build(fname, **opts):
    importlib.reload(gen)
    for a, b in opts.items(): setattr(gen, a, b)
    orig = gen.add_prof
    gen.add_prof = instr
    s, _ = gen.build(prof=True)
    open(f"cdna_kernels/{fname}.s","w").write(s)
build("s_base")
build("s_off", NT="", CODE_PF=0, PB_PREF=0, PC_PREF=0)
```

```python
import importlib, gen2 as gen, sys
A_DBG = gen.A_DBG
def instr(text, name, idx):
    out = []
    for ln in text.split("\n"):
        st = ln.strip()
        if st == name + ":":
            out.append(ln)
            out.append("    s_memrealtime s[88:89]")
            out.append("    s_load_dwordx2 s[92:93], s[0:1], %d" % A_DBG)
        elif st == "s_endpgm":
            out.append("    s_branch ST_EXIT_%d" % idx)
        elif st.startswith(".section .rodata"):
            out.append("ST_EXIT_%d:" % idx)
            out.append("    s_waitcnt vmcnt(0) lgkmcnt(0)")
            out.append("    s_memrealtime s[90:91]")
            out.append("    s_add_u32 s84, s92, %d" % (512*(3-idx)))
            out.append("    s_addc_u32 s85, s93, 0")
            out.append("    s_mov_b32 s86, 256")
            out.append("    s_mov_b32 s87, 0x20000")
            out.append("    s_waitcnt lgkmcnt(0)")
            out.append("    s_cmp_lg_u32 s3, 0")
            out.append("    s_cbranch_scc1 ST_SKIP_%d" % idx)
            out.append("    s_and_b32 s89, s2, 15")
            out.append("    s_cmp_lg_u32 s89, 0")
            out.append("    s_cbranch_scc1 ST_SKIP_%d" % idx)
            out.append("    s_mov_b64 exec, 1")
            out.append("    s_not_b32 s88, s88")
            out.append("    v_mov_b32 v0, s88")
            out.append("    v_mov_b32 v1, s90")
            out.append("    v_mov_b32 v2, 0")
            out.append("    buffer_atomic_umax v0, v2, s[84:87], 0 offen offset:%d" % (8*idx))
            out.append("    buffer_atomic_umax v1, v2, s[84:87], 0 offen offset:%d" % (8*idx+4))
            out.append("    s_waitcnt vmcnt(0)")
            out.append("ST_SKIP_%d:" % idx)
            out.append("    s_endpgm")
            out.append(ln)
        else: out.append(ln)
    return "\n".join(out)
def meas_kernel(expr, M):
    k = gen.K(); gen.header(k, "meas_kernel")
    k("s_load_dwordx2 s[4:5], s[0:1], %d" % A_DBG)
    k("s_waitcnt lgkmcnt(0)")
    k("s_sub_u32 s4, s4, 512")
    k("s_subb_u32 s5, s5, 0")
    k("s_load_dwordx8 s[8:15], s[4:5], 0")
    k("s_waitcnt lgkmcnt(0)")
    for i in range(4): k(f"s_not_b32 s{8+2*i}, s{8+2*i}")
    k(expr)
    k(f"s_mul_i32 s20, s20, {M}")
    k("s_min_u32 s20, s20, 100000")
    k("s_memrealtime s[16:17]")
    k("s_waitcnt lgkmcnt(0)")
    k("MSP:")
    k("s_memrealtime s[18:19]")
    k("s_waitcnt lgkmcnt(0)")
    k("s_sub_u32 s21, s18, s16")
    k("s_cmp_lt_u32 s21, s20")
    k("s_cbranch_scc1 MSP")
    k("s_endpgm")
    return k.text() + gen.kd("meas_kernel", 8)
def build(fname, expr=None, M=1, **opts):
    importlib.reload(gen)
    for a, b in opts.items(): setattr(gen, a, b)
    gen.add_prof = instr
    s, _ = gen.build(prof=True)
    if expr is not None:
        lines = s.split("\n")
        idx = [i for i,x in enumerate(lines) if x.startswith("; @launch")]
        lines[idx[-1]+1:idx[-1]+1] = ["; @launch kernel=meas_kernel grid=(1,1,1) block=(64,1,1) lds=0"]
        s = "\n".join(lines) + meas_kernel(expr, M)
    open(f"cdna_kernels/{fname}.s","w").write(s)
if __name__ == "__main__":
    build("m_zero", "s_mov_b32 s20, 0", 1)
    build("m_span", "s_sub_u32 s20, s15, s8", 5)
    build("m_d0", "s_sub_u32 s20, s9, s8", 10)
    build("m_d1", "s_sub_u32 s20, s11, s10", 10)
    build("m_d2", "s_sub_u32 s20, s13, s12", 10)
    build("m_d3", "s_sub_u32 s20, s15, s14", 10)
```

```python
import sys
from mkstamp import build
for spec in sys.argv[1:]:
    name, _, rest = spec.partition(":")
    opts = {}
    q = "span"
    for kv in filter(None, rest.split(",")):
        a, b = kv.split("=")
        if a == "Q": q = b; continue
        opts[a] = b if not b.lstrip("-").isdigit() else int(b)
    expr = {"span": "s_sub_u32 s20, s15, s8", "d0": "s_sub_u32 s20, s9, s8", "d1": "s_sub_u32 s20, s11, s10", "d2": "s_sub_u32 s20, s13, s12", "d3": "s_sub_u32 s20, s15, s14",
            "g0": "s_sub_u32 s20, s10, s9", "g1": "s_sub_u32 s20, s12, s11", "g2": "s_sub_u32 s20, s14, s13", "zero": "s_mov_b32 s20, 0"}[q]
    build(name, expr, 8, **opts)
    print(name, q, opts)
```

```python
import sys
NAME = "adaLN_cond__ssm_conv_h3__dense_activation_relu__prompt"
A_Q, A_K, A_V, A_SHK, A_SSMK, A_SSMD, A_BX, A_W1, A_W2, A_C, A_WMOD, A_OUT, A_DBG, A_WS = [8*i for i in range(14)]

WS_KVT = 0x000000
WS_QT  = 0x200000
WS_ST1 = 0x400000
WS_MOD = 0x404000
WS_UT  = 0x410000
WS_X1T = 0x500000
WS_X1R = 0x700000
WS_W1F = 0x900000
WS_W2F = 0xB00000
WS_HID = 0xD00000
WS_X1S = 0x1500000
WS_MODP = 0x440000
WS_FLAG = 0x430000
WS_ST2 = 0x420000
WS_PROF = 0x3000000

NT = ""
CODE_PF = 0
FUSED = 1
HS = ""
HL = ""
WS_SYNC = 0x438000
SPIN_MAX = 200000
DBGBAR = 1
X_NOTILE = 0
X_NOMOD = 0
X_NOROLE = 0
K2_AH = 12
K2_PREF = 0
PB_PREF = 1
PC_PREF = 1
K3_P = 8

class K:
    def __init__(self): self.l = []; self.srdl = []; self.kind = {}
    def __call__(self, s=""):
        import re
        for x in s.split("\n"):
            x = x.strip()
            if not x: continue
            if FUSED and x.startswith(("buffer_load", "buffer_store")) and " sc1" not in x:
                m = re.search(r"s\[(\d+):\d+\]", x)
                if self.kind.get(int(m.group(1))) == "ws":
                    x = x[:-4] + " sc1 lds" if x.endswith(" lds") else x + " sc1"
            if x.endswith(":") or x.startswith(";") or x.startswith("."): self.l.append(x)
            else: self.l.append("    " + x)
    def text(self):
        self.check()
        return "\n".join(self.l) + "\n"
    def check(self):
        import re
        last_write = {}
        srd_lines = set(self.srdl)
        for n, ln in enumerate(self.l):
            t = ln.strip()
            if t.startswith(";") or t.endswith(":") or t.startswith("."): continue
            m = re.search(r"s\[(\d+):(\d+)\]", t) if t.startswith("buffer_") else None
            if m:
                for r in range(int(m.group(1)), int(m.group(2))+1):
                    w = last_write.get(r)
                    if w is None or not w[2]:
                        print(f"SRD-CHECK: line {n}: '{t}' uses s{r} last written by: {w}", file=sys.stderr)
            op = t.split()[0]
            if op.startswith("s_") and not op.startswith(("s_cmp", "s_cbranch", "s_branch", "s_waitcnt", "s_barrier", "s_nop", "s_endpgm", "s_sleep", "s_setprio")) or op.startswith(("v_readfirstlane", "v_readlane")) or op.startswith("v_cmp"):
                d = t.split()[1].rstrip(",")
                m2 = re.match(r"s\[(\d+):(\d+)\]", d); m1 = re.match(r"s(\d+)$", d)
                regs = range(int(m2.group(1)), int(m2.group(2))+1) if m2 else ([int(m1.group(1))] if m1 else [])
                for r in regs: last_write[r] = (n, t, n in srd_lines)
    def stamp(self, i):
        if not FUSED: self(f";STAMP {i}")
    def fstamp(self, i):
        if FUSED: self(f";STAMP {i}")
    def srd(self, d, p, size, off=0):
        n0 = len(self.l)
        self.srdl += [n0, n0+1, n0+2, n0+3]
        self.kind[d] = "ws" if p == 4 else "in"
        if off:
            self(f"s_add_u32 s{d}, s{p}, {off:#x}")
            self(f"s_addc_u32 s{d+1}, s{p+1}, 0")
        else:
            self(f"s_mov_b32 s{d}, s{p}")
            self(f"s_mov_b32 s{d+1}, s{p+1}")
        self(f"s_mov_b32 s{d+2}, {size:#x}")
        self(f"s_mov_b32 s{d+3}, 0x20000")

def kd(name, vgpr, sgpr=102, accum=None):
    if accum is None: accum = (vgpr + 3)//4*4
    return f"""
.section .rodata,"a"
.p2align 6
.amdhsa_kernel {name}
  .amdhsa_next_free_vgpr {vgpr}
  .amdhsa_next_free_sgpr {sgpr}
  .amdhsa_accum_offset {accum}
  .amdhsa_group_segment_fixed_size 0
  .amdhsa_kernarg_size 112
  .amdhsa_user_sgpr_count 2
  .amdhsa_user_sgpr_kernarg_segment_ptr 1
  .amdhsa_system_sgpr_workgroup_id_x 1
  .amdhsa_float_denorm_mode_32 3
  .amdhsa_float_denorm_mode_16_64 3
.end_amdhsa_kernel
.text
"""
def header(k, name):
    k(f".globl {name}"); k(".p2align 8"); k(f".type {name},@function"); k(f"{name}:")

def entry(k, end, first=False):
    if first and CODE_PF:
        k("s_cmp_ge_u32 s2, 16")
        k("s_cbranch_scc1 CPF_DONE")
        k("s_getpc_b64 s[6:7]")
        k("CPF_PC:")
        k("v_lshlrev_b32 v1, 7, v0")
        k("v_min_u32 v1, (CODE_END - CPF_PC - 4), v1")
        k(f"global_load_dword v143, v1, s[6:7] {NT}")
        k("CPF_DONE:")
    k("s_cmp_ge_u32 s2, 256")
    k(f"s_cbranch_scc1 {end}")
    k(f"s_load_dwordx2 s[4:5], s[0:1], {A_WS}")
    if FUSED: k(f"s_load_dwordx2 s[70:71], s[0:1], {A_DBG}")
    k("v_lshrrev_b32 v1, 6, v0")
    k("v_and_b32 v0, 63, v0")
    k("s_nop 0")
    k("v_readfirstlane_b32 s3, v1")

_uid = [0]
def uid():
    _uid[0] += 1
    return _uid[0]

def arrive(k, which):
    if not FUSED: return
    k("s_waitcnt vmcnt(0) lgkmcnt(0)")
    if which == DBGBAR: k.fstamp(10)
    k("s_barrier")
    if which == DBGBAR: k.fstamp(11)
    u = uid()
    k("s_cmp_lg_u32 s3, 7")
    k(f"s_cbranch_scc1 ARR{u}")
    k("v_mov_b32 v1, 1")
    k("s_mov_b64 exec, 1")
    if which == 1:
        k(f"s_mov_b32 s69, {SPIN_MAX}")
        k(f"INI{u}:")
        k("v_readfirstlane_b32 s68, v111")
        k("s_cmp_lg_u32 s68, 0")
        k(f"s_cbranch_scc1 INJ{u}")
        k("buffer_load_dword v111, off, s[60:63], 0 sc1")
        k("s_waitcnt vmcnt(0)")
        k("s_sub_u32 s69, s69, 1")
        k(f"s_cbranch_scc0 INI{u}")
        k(f"INJ{u}:")
    if which in (1, 2):
        k("s_and_b32 s68, s2, 7")
        k("s_lshl_b32 s68, s68, 8")
        if which == 2: k("s_add_u32 s68, s68, 0x800")
        k("buffer_atomic_add v1, off, s[64:67], s68 sc0 sc1")
        k("s_waitcnt vmcnt(0)")
        k("v_readfirstlane_b32 s69, v1")
        k("s_cmp_lg_u32 s69, 31")
        k(f"s_cbranch_scc1 ARN{u}")
        k("v_mov_b32 v1, 1")
        k("buffer_store_dword v1, off, s[64:67], s68 offset:128 sc1")
        k(f"ARN{u}:")
    else:
        k("s_and_b32 s68, s2, 31")
        k("s_lshl_b32 s68, s68, 7")
        k("s_add_u32 s68, s68, 0x1000")
        k("buffer_atomic_add v1, off, s[64:67], s68 sc1")
    k("s_mov_b64 exec, -1")
    k(f"ARR{u}:")

def sync(k, which, may_be_7=True):
    if not FUSED: return
    if may_be_7:
        u = uid()
        k("s_cmp_lg_u32 s3, 7")
        k(f"s_cbranch_scc1 SYN{u}")
        k(f"s_mov_b32 s69, {SPIN_MAX}")
        if which in (1, 2):
            k("v_lshlrev_b32 v252, 8, v0")
            k("s_mov_b64 exec, 0xff")
            k(f"POL{u}:")
            k(f"buffer_load_dword v253, v252, s[64:67], 0 offen offset:{0x80 if which == 1 else 0x880} sc1")
            k("s_waitcnt vmcnt(0)")
            k("v_cmp_eq_u32 vcc, 0, v253")
            k("s_cmp_eq_u64 vcc, 0")
            k(f"s_cbranch_scc1 GOT{u}")
        else:
            k("s_and_b32 s68, s2, 31")
            k("s_lshl_b32 s68, s68, 7")
            k("s_add_u32 s68, s68, 0x1000")
            k("s_mov_b64 exec, 1")
            k(f"POL{u}:")
            k("buffer_load_dword v253, off, s[64:67], s68 sc1")
            k("s_waitcnt vmcnt(0)")
            k("v_cmp_gt_u32 vcc, 8, v253")
            k("s_cmp_eq_u64 vcc, 0")
            k(f"s_cbranch_scc1 GOT{u}")
        k("s_sub_u32 s69, s69, 1")
        k(f"s_cbranch_scc0 POL{u}")
        k(f"GOT{u}:")
        k("s_mov_b64 exec, -1")
        k(f"SYN{u}:")
    k("s_barrier")

def round_bf16(k, dst, src):
    k(f"v_cvt_pk_bf16_f32 {dst}, {src}, {src}")
    k(f"v_and_b32 {dst}, 0xffff0000, {dst}")

def ln_finish(k, s1, s2, rstd, mean, tmp):
    t0, t1 = tmp
    k(f"v_mul_f32 {mean}, 0x3b000000, {s1}")
    k(f"v_mul_f32 {t0}, 0x3b000000, {s2}")
    k(f"v_fma_f32 {t0}, -{mean}, {mean}, {t0}")
    k(f"v_max_f32 {t0}, 0, {t0}")
    round_bf16(k, t0, t0)
    k(f"v_add_f32 {t0}, 0x3727c5ac, {t0}")
    round_bf16(k, t0, t0)
    k(f"v_sqrt_f32 {t0}, {t0}")
    k("s_nop 0")
    round_bf16(k, t0, t0)
    k(f"v_rcp_f32 {rstd}, {t0}")
    round_bf16(k, mean, mean)

PA_MOD = 0
PA_W1 = 4096
PA_W2 = PA_W1 + 8192
PA_TQ = PA_W2 + 8192
PA_TKV = PA_TQ + 8192
PA_LDS = PA_TKV + 8192
def phase_a(k, END):
    k(f"s_load_dwordx4 s[8:11], s[0:1], {A_Q}")
    if FUSED:
        k("s_waitcnt lgkmcnt(0)")
        k.srd(60, 70, 256)
        k.srd(64, 4, 0x4000, WS_SYNC)
        k.kind[64] = "sync"
    k("s_cmp_ge_u32 s3, 4")
    k("s_cbranch_scc1 PA_AUX")
    if X_NOTILE:
        k("s_waitcnt lgkmcnt(0)"); k("s_barrier"); k(f"s_branch {END}")
    k(f"s_load_dwordx4 s[12:15], s[0:1], {A_V}")
    k("s_and_b32 s16, s2, 7")
    k("s_lshr_b32 s17, s2, 3")
    k("v_and_b32 v1, 31, v0")
    k("v_lshrrev_b32 v2, 5, v0")
    k("s_lshl_b32 s18, s3, 1")
    k("v_add_u32 v2, s18, v2")
    k("s_lshl_b32 s18, s17, 6")
    k("v_lshlrev_b32 v3, 3, v2")
    k("v_add_u32 v3, s18, v3")
    k("s_lshl_b32 s18, s16, 6")
    k("v_lshlrev_b32 v4, 1, v1")
    k("v_add_u32 v4, s18, v4")
    k("v_lshlrev_b32 v5, 10, v3")
    k("v_lshl_add_u32 v5, v4, 1, v5")
    k("v_subrev_u32 v6, 3072, v5")
    k("v_lshlrev_b32 v7, 3, v4")
    k("s_movk_i32 s18, 0x1000")
    k("s_waitcnt lgkmcnt(0)")
    k.srd(24, 10, 0x200000)
    k.srd(28, 12, 0x200000)
    k.srd(20, 8, 0x200000)
    k.srd(32, 14, 4096)
    for i in range(8):
        so = "0" if i < 4 else "s18"
        k(f"buffer_load_dword v{32+i}, v5, s[20:23], {so} offen offset:{(i%4)*1024} {NT}")
    k(f"buffer_load_dwordx4 v[40:43], v7, s[32:35], 0 offen {NT}")
    for i in range(3):
        k(f"buffer_load_dword v{10+i}, v6, s[24:27], 0 offen offset:{i*1024} {NT}")
    for base, srd in [(13, 24), (22, 28)]:
        for i in range(8):
            so = "0" if i < 4 else "s18"
            k(f"buffer_load_dword v{base+i}, v5, s[{srd}:{srd+3}], {so} offen offset:{(i%4)*1024} {NT}")
    k.srd(36, 4, 0x200000, WS_KVT)
    k.srd(40, 4, 0x200000, WS_QT)
    k("v_and_b32 v8, 7, v1")
    k("v_xor_b32 v9, v2, v8")
    k("v_lshlrev_b32 v44, 8, v1")
    k("v_lshl_add_u32 v45, v9, 4, v44")
    k(f"v_add_u32 v45, {PA_TQ}, v45")
    k("v_xor_b32 v9, 7, v9")
    k("v_lshl_add_u32 v44, v9, 4, v44")
    k(f"v_add_u32 v44, {PA_TKV}, v44")
    k("v_lshrrev_b32 v96, 3, v0")
    k("s_lshl_b32 s45, s3, 4")
    k("v_add_u32 v96, s45, v96")
    k("v_and_b32 v97, 7, v0")
    k("v_bfe_u32 v98, v96, 1, 3")
    k("v_xor_b32 v98, v97, v98")
    k("v_lshlrev_b32 v98, 4, v98")
    k("v_lshl_add_u32 v98, v96, 7, v98")
    k("v_xor_b32 v99, 64, v98")
    k("v_add_u32 v99, 1024, v99")
    k("s_lshl_b32 s45, s16, 6")
    k("v_add_u32 v96, s45, v96")
    k("v_lshlrev_b32 v96, 12, v96")
    k("v_lshl_add_u32 v96, v97, 4, v96")
    k("s_lshl_b32 s46, s17, 7")
    k("s_sub_u32 s47, 3968, s46")
    k("s_add_u32 s48, s46, 32768")
    k("s_add_u32 s49, s47, 32768")
    k("s_mov_b32 s19, 0x05040100")
    k("s_mov_b32 s44, 0x07060302")
    k.stamp(0)
    k("s_waitcnt vmcnt(20)")
    for i in range(4): k(f"v_perm_b32 v{88+i}, v{33+2*i}, v{32+2*i}, s19")
    for i in range(4): k(f"v_perm_b32 v{92+i}, v{33+2*i}, v{32+2*i}, s44")
    k("ds_write_b128 v45, v[88:91]")
    k("ds_write_b128 v45, v[92:95] offset:128")
    k("s_waitcnt vmcnt(0)")
    k.stamp(1)
    for i in range(4):
        k(f"v_lshlrev_b32 v{46+2*i}, 16, v{40+i}")
        k(f"v_and_b32 v{47+2*i}, 0xffff0000, v{40+i}")
    for e in range(2):
        w = 46 + 4*e
        for i in range(11):
            k(f"v_lshlrev_b32 v{60+i}, 16, v{10+i}" if e == 0 else f"v_and_b32 v{60+i}, 0xffff0000, v{10+i}")
        for r in range(8): k(f"v_mul_f32 v{72+r}, v{63+r}, v{w}")
        for j in range(1,4):
            for r in range(8): k(f"v_fmac_f32 v{72+r}, v{63+r-j}, v{w+j}")
        for r in range(8):
            k(f"v_lshlrev_b32 v{60+r}, 16, v{22+r}" if e == 0 else f"v_and_b32 v{60+r}, 0xffff0000, v{22+r}")
        for r in range(8): k(f"v_mul_f32 v{72+r}, v{72+r}, v{60+r}")
        for i in range(4): k(f"v_cvt_pk_bf16_f32 v{80+4*e+i}, v{72+7-2*i}, v{72+6-2*i}")
        k(f"ds_write_b128 v44, v[{80+4*e}:{83+4*e}] offset:{128*e}")
    k("s_waitcnt lgkmcnt(0)")
    k.stamp(2)
    k("s_barrier")
    for m in range(2):
        k(f"ds_read_b128 v[{60+4*m}:{63+4*m}], v{98+m} offset:{PA_TQ}")
        k(f"ds_read_b128 v[{68+4*m}:{71+4*m}], v{98+m} offset:{PA_TKV}")
    k("s_waitcnt lgkmcnt(0)")
    k("buffer_store_dwordx4 v[60:63], v96, s[40:43], s46 offen")
    k("buffer_store_dwordx4 v[68:71], v96, s[36:39], s47 offen")
    k("buffer_store_dwordx4 v[64:67], v96, s[40:43], s48 offen")
    k("buffer_store_dwordx4 v[72:75], v96, s[36:39], s49 offen")
    k("s_barrier")
    k(f"s_branch {END}")

    k("PA_AUX:")
    k(f"s_load_dwordx4 s[12:15], s[0:1], {A_C}")
    k(f"s_load_dwordx4 s[48:51], s[0:1], {A_W1}")
    k(f"s_load_dwordx2 s[52:53], s[0:1], {A_SSMK}")
    k("s_sub_u32 s16, s3, 4")
    k("s_mul_hi_u32 s18, s2, 0x5555556")
    k("s_mul_i32 s17, s18, 48")
    k("s_sub_u32 s19, s2, s17")
    k("v_and_b32 v1, 7, v0")
    k("v_lshrrev_b32 v2, 3, v0")
    k("s_lshl_b32 s17, s18, 2")
    k("s_add_u32 s17, s17, s16")
    k("s_lshl_b32 s17, s17, 3")
    k("v_add_u32 v2, s17, v2")
    k("v_mul_u32_u24 v3, 24576, v2")
    k("v_lshl_add_u32 v3, v1, 4, v3")
    k("s_lshl_b32 s17, s19, 7")
    k("v_add_u32 v3, s17, v3")
    k("v_lshlrev_b32 v4, 3, v2")
    k("v_lshrrev_b32 v5, 5, v0")
    k("s_lshl_b32 s17, s2, 3")
    k("s_lshl_b32 s20, s16, 1")
    k("s_add_u32 s17, s17, s20")
    k("v_add_u32 v5, s17, v5")
    k("v_and_b32 v6, 31, v0")
    k("v_lshlrev_b32 v7, 10, v5")
    k("v_lshl_add_u32 v7, v6, 4, v7")
    k("s_mov_b32 s21, 6144")
    k("s_mov_b32 s22, 12288")
    k("s_mov_b32 s23, 18432")
    k("v_lshlrev_b32 v100, 4, v0")
    k.stamp(8)
    k("s_waitcnt lgkmcnt(0)")
    k.stamp(9)
    if FUSED:
        u = uid()
        k("s_cmp_lg_u32 s3, 7"); k(f"s_cbranch_scc1 PAY{u}")
        k("s_cmp_lg_u32 s2, 0"); k(f"s_cbranch_scc1 PAY{u}")
        k("v_lshlrev_b32 v110, 7, v0")
        k("v_mov_b32 v111, 0")
        k("buffer_store_dword v111, v110, s[64:67], 0 offen sc1")
        k("s_movk_i32 s54, 0x2000")
        k("s_mov_b32 exec_hi, 0")
        k("buffer_store_dword v111, v110, s[64:67], s54 offen sc1")
        k("s_mov_b64 exec, -1")
        k("s_waitcnt vmcnt(0)")
        k("v_mov_b32 v111, 1")
        k("s_mov_b64 exec, 1")
        k("buffer_store_dword v111, off, s[60:63], 0 sc1")
        k("s_mov_b64 exec, -1")
        k(f"PAY{u}:")
    k.srd(24, 8, 0x200000)
    k.srd(28, 12, 1024)
    k.srd(32, 14, 512*6144)
    k(f"buffer_load_dwordx4 v[8:11], v7, s[24:27], 0 offen {NT}")
    k(f"buffer_load_dwordx4 v[12:15], v7, s[24:27], 0 offen offset:512 {NT}")
    k("s_cmp_ge_u32 s18, 4")
    k("s_cbranch_scc1 PA_NOMODLD")
    k(f"buffer_load_dwordx2 v[16:17], v4, s[28:31], 0 offen {NT}")
    for i in range(4):
        so = "0" if i == 0 else f"s{20+i}"
        if not X_NOMOD: k(f"buffer_load_dwordx4 v[{20+4*i}:{23+4*i}], v3, s[32:35], {so} offen {NT}")
    k("PA_NOMODLD:")
    k.stamp(10)
    if X_NOROLE: k("s_branch PA_LDONE")
    k("s_cmp_eq_u32 s3, 7")
    k("s_cbranch_scc1 PA_L7")
    k("s_cmp_ge_u32 s2, 224")
    k("s_cbranch_scc1 PA_LDONE")
    k("s_cmp_eq_u32 s3, 4")
    k("s_cbranch_scc0 PA_L56")
    k("s_and_b32 s7, s2, 7")
    k("s_lshr_b32 s6, s2, 3")
    k("v_lshrrev_b32 v101, 3, v0")
    k("v_and_b32 v102, 7, v0")
    k("v_bfe_u32 v103, v0, 4, 1")
    k("v_lshlrev_b32 v103, 2, v103")
    k("v_xor_b32 v102, v102, v103")
    k("v_mul_u32_u24 v101, 3584, v101")
    k("v_lshl_add_u32 v101, v102, 4, v101")
    k("s_lshl_b32 s17, s6, 7")
    k("v_add_u32 v101, s17, v101")
    k(f"s_mul_i32 s54, s7, {64*3584}")
    k(f"s_mov_b32 s55, {PA_W1}")
    k.srd(56, 48, 512*3584)
    for i in range(8):
        k("s_mov_b32 m0, s55")
        k("s_add_u32 s55, s55, 1024")
        k(f"buffer_load_dwordx4 v101, s[56:59], s54 offen {NT} lds")
        k(f"s_add_u32 s54, s54, {8*3584}")
    k("s_branch PA_LDONE")
    k("PA_L56:")
    k("s_lshl_b32 s6, s2, 1")
    k("s_add_u32 s6, s6, s3")
    k("s_sub_u32 s6, s6, 5")
    k("s_and_b32 s7, s6, 3")
    k("s_lshr_b32 s6, s6, 2")
    k("v_lshrrev_b32 v101, 4, v0")
    k("v_and_b32 v102, 15, v0")
    k("v_lshlrev_b32 v103, 2, v101")
    k("v_xor_b32 v102, v102, v103")
    k("v_lshlrev_b32 v102, 4, v102")
    k("v_lshl_add_u32 v101, v101, 10, v102")
    k("s_lshl_b32 s17, s7, 8")
    k("v_add_u32 v101, s17, v101")
    k("s_lshl_b32 s54, s6, 14")
    k("s_sub_u32 s55, s3, 5")
    k("s_lshl_b32 s55, s55, 12")
    k(f"s_add_u32 s55, s55, {PA_W2}")
    k.srd(56, 50, 1792*1024)
    for i in range(4):
        k("s_mov_b32 m0, s55")
        k("s_add_u32 s55, s55, 1024")
        k(f"buffer_load_dwordx4 v101, s[56:59], s54 offen {NT} lds")
        k("s_add_u32 s54, s54, 4096")
    k("s_branch PA_LDONE")
    k("PA_L7:")
    if FUSED: k("s_branch PA_LDONE")
    k("s_and_b32 s6, s2, 7")
    k("s_lshl_b32 s6, s6, 6")
    k("s_lshr_b32 s7, s2, 3")
    k("s_lshl_b32 s7, s7, 1")
    k("s_add_u32 s6, s6, s7")
    k("s_lshl_b32 s54, s6, 12")
    k.srd(56, 52, 0x200000)
    for i in range(8):
        k(f"buffer_load_dwordx4 v[{104+4*(i%4)}:{107+4*(i%4)}], v100, s[56:59], s54 offen offset:{(i%4)*1024} {NT}")
        if i == 3: k("s_add_u32 s54, s54, 4096")
    k("PA_LDONE:")
    if FUSED:
        u = uid()
        k("s_cmp_lg_u32 s3, 7"); k(f"s_cbranch_scc1 PAZ{u}")
        k("buffer_load_dword v111, off, s[60:63], 0 sc1")
        k(f"PAZ{u}:")
    k.stamp(3)
    k("s_barrier")
    k.srd(36, 4, 0x4000, WS_ST1)
    k.srd(40, 4, 4*12288, WS_MODP)
    k("s_mov_b32 s44, 0x3f803f80")
    for i in range(4): k(f"v_mov_b32 v{40+i}, 0")
    k("s_waitcnt vmcnt(0)")
    k.stamp(4)
    for j in range(8):
        k(f"v_dot2_f32_bf16 v{40+(j&1)}, v{8+j}, s44, v{40+(j&1)}")
        k(f"v_dot2_f32_bf16 v{42+(j&1)}, v{8+j}, v{8+j}, v{42+(j&1)}")
    k("s_nop 2")
    k("v_add_f32 v40, v40, v41")
    k("v_add_f32 v42, v42, v43")
    for dpp in ["quad_perm:[1,0,3,2] row_mask:0xf", "quad_perm:[2,3,0,1] row_mask:0xf", "row_half_mirror row_mask:0xf", "row_mirror row_mask:0xf", "row_bcast:15 row_mask:0xa"]:
        k("s_nop 1")
        k(f"v_add_f32_dpp v40, v40, v40 {dpp} bank_mask:0xf")
        k(f"v_add_f32_dpp v42, v42, v42 {dpp} bank_mask:0xf")
    ln_finish(k, "v40", "v42", "v44", "v45", ["v46", "v47"])
    k("v_mul_f32 v45, v45, v44")
    k("v_sub_f32 v45, 0, v45")
    k("v_lshlrev_b32 v46, 2, v5")
    k("v_cmp_eq_u32 vcc, 16, v6")
    k("s_movk_i32 s45, 0x2000")
    k("s_and_saveexec_b64 s[46:47], vcc")
    k("buffer_store_dword v44, v46, s[36:39], 0 offen")
    k("buffer_store_dword v45, v46, s[36:39], s45 offen")
    k("s_mov_b64 exec, s[46:47]")
    k.stamp(5)
    k("s_cmp_eq_u32 s3, 7")
    k("s_cbranch_scc1 PA_WDONE")
    k("s_cmp_ge_u32 s2, 224")
    k("s_cbranch_scc1 PA_WDONE")
    k("s_cmp_eq_u32 s3, 4")
    k("s_cbranch_scc0 PA_S56")
    k.srd(56, 4, 56*32*1024, WS_W1F)
    k("v_bfe_u32 v101, v0, 2, 2")
    k("v_lshrrev_b32 v102, 5, v0")
    k("v_lshl_add_u32 v102, v102, 3, v101")
    k("v_lshlrev_b32 v102, 7, v102")
    k("v_bfe_u32 v103, v0, 4, 1")
    k("v_lshl_add_u32 v102, v103, 5, v102")
    k("v_and_b32 v103, 3, v0")
    k("v_lshl_add_u32 v102, v103, 3, v102")
    k("v_lshrrev_b32 v101, 1, v101")
    k("v_lshl_add_u32 v101, v101, 6, v102")
    k(f"v_add_u32 v101, {PA_W1}, v101")
    k("v_xor_b32 v102, 64, v101")
    for a in range(2):
        for st in range(4):
            r = 104 + 16*a + 4*st
            k(f"ds_read_b64_tr_b16 v[{r}:{r+1}], v{101+a} offset:{st*2048}")
            k(f"ds_read_b64_tr_b16 v[{r+2}:{r+3}], v{101+a} offset:{st*2048+512}")
        k("s_waitcnt lgkmcnt(0)")
    k("s_lshl_b32 s54, s6, 16")
    k("s_lshl_b32 s55, s7, 12")
    k("s_add_u32 s54, s54, s55")
    k("s_add_u32 s55, s54, 32768")
    for a in range(2):
        for st in range(4):
            r = 104 + 16*a + 4*st
            k(f"buffer_store_dwordx4 v[{r}:{r+3}], v100, s[56:59], s{54+a} offen offset:{st*1024}")
    k("s_branch PA_WDONE")
    k("PA_S56:")
    k.srd(56, 4, 16*112*1024, WS_W2F)
    k("v_bfe_u32 v101, v0, 2, 2")
    k("v_lshrrev_b32 v102, 5, v0")
    k("v_lshl_add_u32 v102, v102, 2, v101")
    k("v_lshlrev_b32 v102, 8, v102")
    k("v_bfe_u32 v103, v0, 4, 1")
    k("v_lshl_add_u32 v102, v103, 5, v102")
    k("v_and_b32 v103, 3, v0")
    k("v_lshl_add_u32 v102, v103, 3, v102")
    k("s_sub_u32 s55, s3, 5")
    k("s_lshl_b32 s55, s55, 12")
    k(f"s_add_u32 s55, s55, {PA_W2}")
    k("v_add_u32 v102, s55, v102")
    for a in range(4):
        k(f"v_xor_b32 v103, {a}, v101")
        k(f"v_lshl_add_u32 v103, v103, 6, v102")
        k(f"ds_read_b64_tr_b16 v[{104+4*a}:{104+4*a+1}], v103")
        k(f"ds_read_b64_tr_b16 v[{104+4*a+2}:{104+4*a+3}], v103 offset:2048")
    k(f"s_mul_i32 s54, s7, {4*112*1024}")
    k("s_lshl_b32 s55, s6, 10")
    k("s_add_u32 s54, s54, s55")
    k("s_waitcnt lgkmcnt(0)")
    for a in range(4):
        k(f"buffer_store_dwordx4 v[{104+4*a}:{104+4*a+3}], v100, s[56:59], s54 offen")
        k(f"s_add_u32 s54, s54, {112*1024}")
    k("PA_WDONE:")
    k.stamp(6)
    k("s_cmp_ge_u32 s18, 4")
    k("s_cbranch_scc1 PA_NOMOD")
    k("v_lshlrev_b32 v50, 16, v16"); k("v_and_b32 v51, 0xffff0000, v16")
    k("v_lshlrev_b32 v52, 16, v17"); k("v_and_b32 v53, 0xffff0000, v17")
    k("s_mov_b32 s45, 0xbfb8aa3b")
    for i in range(4): k(f"v_mul_f32 v{60+i}, s45, v{50+i}")
    for i in range(4): k(f"v_exp_f32 v{60+i}, v{60+i}")
    k("s_nop 0")
    for i in range(4): k(f"v_add_f32 v{60+i}, 1.0, v{60+i}")
    for i in range(4): k(f"v_rcp_f32 v{60+i}, v{60+i}")
    k("s_nop 0")
    for i in range(4): k(f"v_mul_f32 v{60+i}, v{50+i}, v{60+i}")
    for i in range(4): k(f"v_cvt_pk_bf16_f32 v{70+i}, v{60+i}, v{60+i}")
    for i in range(4): k(f"v_and_b32 v{60+i}, 0xffff0000, v{70+i}")
    for i in range(4): k(f"v_and_b32 v{70+i}, 0xffff, v{70+i}")
    for c in range(8): k(f"v_mov_b32 v{80+c}, 0")
    for i in range(4):
        for j in range(4):
            k(f"v_dot2_f32_bf16 v{80+2*j}, v{20+4*i+j}, v{70+i}, v{80+2*j}")
            k(f"v_dot2_f32_bf16 v{81+2*j}, v{20+4*i+j}, v{60+i}, v{81+2*j}")
    k("s_nop 2")
    for c in range(8):
        k(f"v_add_f32_dpp v{80+c}, v{80+c}, v{80+c} row_ror:8 row_mask:0xf bank_mask:0xf")
    k("v_lshrrev_b32 v5, 4, v0")
    k("s_lshl_b32 s17, s16, 2")
    k("v_add_u32 v5, s17, v5")
    k("v_lshlrev_b32 v5, 8, v5")
    k("v_lshl_add_u32 v5, v1, 5, v5")
    k(f"v_add_u32 v5, {PA_MOD}, v5")
    k("v_and_b32 v6, 15, v0")
    k("v_cmp_gt_u32 vcc, 8, v6")
    k("s_and_saveexec_b64 s[46:47], vcc")
    k("ds_write_b128 v5, v[80:83]")
    k("ds_write_b128 v5, v[84:87] offset:16")
    k("s_mov_b64 exec, s[46:47]")
    k("s_waitcnt lgkmcnt(0)")
    k("PA_NOMOD:")
    k.stamp(7)
    k("s_barrier")
    k("s_cmp_ge_u32 s18, 4")
    k(f"s_cbranch_scc1 {END}")
    k("s_cmp_lg_u32 s3, 4")
    k(f"s_cbranch_scc1 {END}")
    k("v_lshlrev_b32 v5, 2, v0")
    for i in range(16):
        k(f"ds_read_b32 v{8+i}, v5 offset:{PA_MOD + i*256}")
        if i == 14: k("s_waitcnt lgkmcnt(0)")
    k("s_waitcnt lgkmcnt(0)")
    for st in [8, 4, 2, 1]:
        for i in range(st): k(f"v_add_f32 v{8+i}, v{8+i}, v{8+i+st}")
    k("s_mul_i32 s17, s18, 12288")
    k("s_lshl_b32 s20, s19, 8")
    k("s_add_u32 s17, s17, s20")
    k("buffer_store_dword v8, v5, s[40:43], s17 offen")

XR_BYTES = 4608
KC_STRIDE = 4160
CH_BYTES = XR_BYTES + 4*KC_STRIDE
RED_OFF = 2*CH_BYTES
PREP_OFF = RED_OFF + 16384
PB_LDS = PREP_OFF + 1024
def phase_b(k, END):
    k("s_cmp_ge_u32 s3, 4")
    k("s_cbranch_scc1 PB_PREP")
    k(f"s_load_dwordx4 s[8:11], s[0:1], {A_SSMK}")
    k("s_lshr_b32 s6, s3, 1")
    k("s_and_b32 s12, s3, 1")
    k("s_and_b32 s13, s2, 7")
    k("s_lshl_b32 s13, s13, 6")
    k("s_lshr_b32 s14, s2, 3")
    k("s_lshl_b32 s14, s14, 1")
    k("s_add_u32 s13, s13, s14")
    k("s_add_u32 s13, s13, s6")
    k("s_lshl_b32 s14, s13, 12")
    k(f"s_mul_i32 s15, s6, {CH_BYTES}")
    k("v_lshlrev_b32 v2, 4, v0")
    k("s_waitcnt lgkmcnt(0)")
    k.srd(28, 8, 0x200000)
    k(f"buffer_load_dwordx2 v[18:19], off, s[28:31], s14 {NT}")
    for ee in range(2):
        k(f"s_lshl_b32 s48, s12, 2")
        k(f"s_add_u32 s49, s14, s48")
        k(f"s_add_u32 s49, s49, {2+2*ee}")
        k(f"s_mul_i32 s50, s12, {2*KC_STRIDE}")
        k(f"s_add_u32 s50, s50, s15")
        k(f"s_add_u32 s50, s50, {XR_BYTES + ee*KC_STRIDE + 32}")
        k("s_mov_b32 m0, s50")
        k("s_nop 0")
        for c in range(4):
            k(f"buffer_load_dwordx4 v2, s[28:31], s49 offen offset:{c*1024} {NT} lds")
    k.srd(36, 4, 0x200000, WS_QT)
    k.srd(40, 4, 0x4000, WS_ST1)
    k.srd(44, 4, 0x200000, WS_X1T)
    k.srd(52, 10, 1024)
    k.srd(56, 4, 4*12288, WS_MODP)
    k("v_and_b32 v3, 15, v0")
    k("v_lshrrev_b32 v4, 4, v0")
    k("v_lshlrev_b32 v5, 4, v3")
    k("v_lshl_add_u32 v5, v4, 2, v5")
    k("s_lshl_b32 s48, s12, 10")
    k("v_add_u32 v5, s48, v5")
    k("v_lshlrev_b32 v6, 1, v5")
    k("v_lshlrev_b32 v7, 2, v5")
    QV, SV = 200, 208
    k("s_lshl_b32 s20, s13, 1")
    k(f"buffer_load_ushort v240, off, s[52:55], s20 {NT}")
    k("v_and_b32 v241, 3, v0")
    k("v_cmp_eq_u32 vcc, 3, v241")
    k("s_nop 1")
    k("v_addc_co_u32 v241, vcc, 0, v241, vcc")
    k("v_lshlrev_b32 v241, 11, v241")
    k("v_bfe_u32 v242, v0, 2, 2")
    k("v_mul_u32_u24 v242, 12288, v242")
    k("v_add_u32 v241, v241, v242")
    k.srd(8, 4, 0x200000, WS_X1S)
    for i in range(8, 12): k(f"v_mov_b32 v{i}, 0")
    k("v_lshlrev_b32 v12, 3, v0")
    k("s_add_u32 s48, s15, 4096")
    k("v_add_u32 v12, s48, v12")
    k("ds_write_b64 v12, v[8:9]")
    k("v_bfe_u32 v14, v0, 2, 2")
    k(f"v_mul_u32_u24 v14, {KC_STRIDE}, v14")
    k("v_and_b32 v15, 3, v0")
    k("v_lshl_add_u32 v14, v15, 3, v14")
    k("v_lshl_add_u32 v14, v4, 4, v14")
    k("s_lshl_b32 s48, s12, 8")
    k("s_add_u32 s48, s48, s15")
    k(f"s_add_u32 s49, s48, {XR_BYTES}")
    k("v_add_u32 v14, s49, v14")
    k("v_lshlrev_b32 v15, 4, v4")
    k("v_lshlrev_b32 v16, 5, v3")
    k("v_sub_u32 v15, v15, v16")
    k("s_add_u32 s49, s48, 480")
    k("v_add_u32 v15, s49, v15")
    ACC = 20; FA = [64, 128]; FB = [96, 160]
    for i in range(32): k(f"v_mov_b32 v{ACC+i}, 0")
    k("v_lshrrev_b32 v12, 1, v0")
    k(f"v_mul_u32_u24 v12, {KC_STRIDE}, v12")
    k("v_and_b32 v13, 1, v0")
    k("v_lshl_add_u32 v12, v13, 4, v12")
    k(f"s_mul_i32 s50, s12, {2*KC_STRIDE}")
    k("s_add_u32 s50, s50, s15")
    k(f"s_add_u32 s50, s50, {XR_BYTES}")
    k("v_add_u32 v12, s50, v12")
    k("s_waitcnt vmcnt(9)")
    k("v_lshlrev_b32 v52, 16, v18")
    k("v_alignbit_b32 v53, v19, v18, 16")
    k("v_cmp_eq_u32 vcc, 1, v0")
    k("s_cmp_eq_u32 s12, 0")
    k("s_cbranch_scc0 PB_FX1")
    k("v_cndmask_b32 v11, v18, v52, vcc")
    k("s_branch PB_FX2")
    k("PB_FX1:")
    k("v_cndmask_b32 v10, v18, v52, vcc")
    k("v_cndmask_b32 v11, v19, v53, vcc")
    k("PB_FX2:")
    k("v_cmp_eq_u32 vcc, 1, v13")
    k("s_nop 1")
    k("v_cndmask_b32 v10, 0, v10, vcc")
    k("v_cndmask_b32 v11, 0, v11, vcc")
    k("s_mov_b64 exec, 0xf")
    k("ds_write_b128 v12, v[8:11]")
    k("s_mov_b64 exec, -1")
    k.stamp(0)
    sync(k, 1, may_be_7=False)
    k.fstamp(1)
    k.srd(32, 4, 0x200000, WS_KVT)
    k("s_lshl_b32 s48, s12, 11")
    k("s_add_u32 s49, s14, s48")
    k("s_add_u32 s50, s15, s48")
    k("s_mov_b32 m0, s50")
    k("s_nop 0")
    k("buffer_load_dwordx4 v2, s[32:35], s49 offen lds")
    k("buffer_load_dwordx4 v2, s[32:35], s49 offen offset:1024 lds")
    for i in range(4):
        k(f"buffer_load_dwordx2 v[{QV+2*i}:{QV+2*i+1}], v6, s[36:39], s14 offen offset:{i*512}")
    k("s_movk_i32 s51, 0x2000")
    for i in range(4):
        k(f"buffer_load_dwordx4 v[{SV+8*i}:{SV+8*i+3}], v7, s[40:43], 0 offen offset:{i*1024}")
        k(f"buffer_load_dwordx4 v[{SV+8*i+4}:{SV+8*i+7}], v7, s[40:43], s51 offen offset:{i*1024}")
    k("s_lshl_b32 s20, s13, 2")
    k("buffer_load_dword v241, v241, s[56:59], s20 offen")
    k("s_waitcnt vmcnt(13) lgkmcnt(0)")
    k("s_barrier")
    k.stamp(1)
    k.fstamp(2)
    def loads(ph, st):
        out = []
        for tt in range(8):
            c = tt
            out.append(f"ds_read_b128 v[{FB[st]+4*c}:{FB[st]+4*c+3}], v15 offset:{3584-512*c+64*ph}")
            out.append(f"ds_read_b64_tr_b16 v[{FA[st]+4*tt}:{FA[st]+4*tt+1}], v14 offset:{64*ph+512*tt}")
            out.append(f"ds_read_b64_tr_b16 v[{FA[st]+4*tt+2}:{FA[st]+4*tt+3}], v14 offset:{64*ph+512*tt+8}")
        return out
    def mfmas(st):
        pairs = [(tt, c) for tt in range(8) for c in range(8-tt)]
        pairs.sort(key=lambda p: (max(p), p[0]))
        return [f"v_mfma_f32_16x16x32_bf16 v[{ACC+4*(tt+c)}:{ACC+4*(tt+c)+3}], v[{FA[st]+4*tt}:{FA[st]+4*tt+3}], v[{FB[st]+4*c}:{FB[st]+4*c+3}], v[{ACC+4*(tt+c)}:{ACC+4*(tt+c)+3}]" for tt, c in pairs], pairs
    for x in loads(0, 0): k(x)
    for ph in range(4):
        st = ph % 2
        ms, pairs = mfmas(st)
        ls = loads(ph+1, 1-st) if ph < 3 else []
        if ph > 0: k("s_waitcnt lgkmcnt(0)")
        li = 0; done = -1
        for i, m in enumerate(ms):
            if ph == 0:
                need = max(pairs[i])
                if need > done:
                    out = 24 + li - 3*(need+1)
                    k(f"s_waitcnt lgkmcnt({min(out,15)})")
                    done = need
            k(m)
            if li < len(ls) and (ph > 0 or i >= 8) and i < 34:
                k(ls[li]); li += 1
        while li < len(ls):
            k(ls[li]); li += 1
    k.stamp(2)
    k.fstamp(3)
    k("s_lshl_b32 s48, s3, 12")
    k(f"s_add_u32 s48, s48, {RED_OFF}")
    k("v_add_u32 v16, s48, v2")
    k("s_xor_b32 s49, s3, 1")
    k("s_lshl_b32 s49, s49, 12")
    k(f"s_add_u32 s49, s49, {RED_OFF}")
    k("v_add_u32 v17, s49, v2")
    k("v_lshlrev_b32 v18, 1, v5")
    k("s_add_u32 s48, s15, 4088")
    k("v_sub_u32 v18, s48, v18")
    k("v_subrev_u32 v18, 1536, v18")
    for i in range(4):
        k(f"ds_read_b64 v[{80+2*i}:{80+2*i+1}], v18 offset:{(3-i)*512}")
    k("s_nop 3")
    k("s_cmp_eq_u32 s12, 0")
    k("s_cbranch_scc0 PB_H1")
    for i in range(4):
        k(f"ds_write_b128 v16, v[{ACC+16+4*i}:{ACC+16+4*i+3}] offset:{i*1024}")
    k("s_branch PB_HX")
    k("PB_H1:")
    for i in range(4):
        k(f"ds_write_b128 v16, v[{ACC+4*i}:{ACC+4*i+3}] offset:{i*1024}")
    k("s_waitcnt lgkmcnt(0)")
    for i in range(16): k(f"v_mov_b32 v{ACC+i}, v{ACC+16+i}")
    k("PB_HX:")
    k("s_waitcnt lgkmcnt(0)")
    k("s_barrier")
    for i in range(4):
        k(f"ds_read_b128 v[{64+4*i}:{64+4*i+3}], v17 offset:{i*1024}")
    k("s_waitcnt vmcnt(0)")
    k.stamp(3)
    k("v_lshlrev_b32 v240, 16, v240")
    k("v_add_f32_dpp v241, v241, v241 row_ror:4 row_mask:0xf bank_mask:0xf")
    k("s_nop 1")
    k("v_add_f32_dpp v241, v241, v241 row_ror:8 row_mask:0xf bank_mask:0xf")
    round_bf16(k, "v241", "v241")
    k("v_add_f32 v242, 1.0, v241")
    round_bf16(k, "v242", "v242")
    k("s_nop 0")
    k("v_readlane_b32 s52, v241, 0")
    k("v_readlane_b32 s53, v242, 1")
    k("v_readlane_b32 s54, v241, 2")
    k("v_readlane_b32 s55, v242, 3")
    k("v_mov_b32 v241, s52")
    for i in range(4):
        a = ACC + 4*i
        t = 100 + 16*i
        k(f"v_and_b32 v{t}, 0xffff0000, v{80+2*i+1}")
        k(f"v_lshlrev_b32 v{t+1}, 16, v{80+2*i+1}")
        k(f"v_and_b32 v{t+2}, 0xffff0000, v{80+2*i}")
        k(f"v_lshlrev_b32 v{t+3}, 16, v{80+2*i}")
        for j in range(4): k(f"v_fmac_f32 v{a+j}, v240, v{t+j}")
        k(f"v_lshlrev_b32 v{t+4}, 16, v{QV+2*i}")
        k(f"v_and_b32 v{t+5}, 0xffff0000, v{QV+2*i}")
        k(f"v_lshlrev_b32 v{t+6}, 16, v{QV+2*i+1}")
        k(f"v_and_b32 v{t+7}, 0xffff0000, v{QV+2*i+1}")
        for j in range(4): k(f"v_fma_f32 v{t+8+j}, v{t+4+j}, v{SV+8*i+j}, v{SV+8*i+4+j}")
        for j in range(4): k(f"v_fma_f32 v{t+8+j}, v{t+8+j}, s53, v241")
        for j in range(4): k(f"v_mul_f32 v{t+8+j}, s54, v{t+8+j}")
    k("s_waitcnt lgkmcnt(0)")
    for i in range(4):
        a = ACC + 4*i
        t = 100 + 16*i
        for j in range(4): k(f"v_add_f32 v{a+j}, v{a+j}, v{64+4*i+j}")
        for j in range(4): k(f"v_fma_f32 v{t+8+j}, v{t+8+j}, v{a+j}, v{t+4+j}")
        k(f"v_cvt_pk_bf16_f32 v{170+2*i}, v{t+8}, v{t+9}")
        k(f"v_cvt_pk_bf16_f32 v{170+2*i+1}, v{t+10}, v{t+11}")
        k(f"buffer_store_dwordx2 v[{170+2*i}:{170+2*i+1}], v6, s[44:47], s14 offen offset:{i*512}")
        k(f"v_lshlrev_b32 v{t}, 16, v{170+2*i}")
        k(f"v_and_b32 v{t+1}, 0xffff0000, v{170+2*i}")
        k(f"v_lshlrev_b32 v{t+2}, 16, v{170+2*i+1}")
        k(f"v_and_b32 v{t+3}, 0xffff0000, v{170+2*i+1}")
        for j in range(4): k(f"v_mul_f32 v{t+j}, s55, v{t+j}")
        k(f"v_cvt_pk_bf16_f32 v{180+2*i}, v{t}, v{t+1}")
        k(f"v_cvt_pk_bf16_f32 v{180+2*i+1}, v{t+2}, v{t+3}")
        k(f"buffer_store_dwordx2 v[{180+2*i}:{180+2*i+1}], v6, s[8:11], s14 offen offset:{i*512}")
    k.stamp(4)
    k(f"s_branch {END}")

    k("PB_PREP:")
    k("v_lshlrev_b32 v10, 4, v0")
    k("s_waitcnt lgkmcnt(0)")
    k.srd(20, 4, 56*32*1024, WS_W1F)
    k("s_cmp_eq_u32 s3, 4")
    k("s_cbranch_scc0 PB_PF")
    sync(k, 1, may_be_7=False)
    k("s_cmp_ge_u32 s2, 224")
    k("s_cbranch_scc1 PB_IDLE")
    k("s_lshr_b32 s6, s2, 2")
    k("s_and_b32 s7, s2, 3")
    k("v_lshrrev_b32 v4, 5, v0")
    k("v_lshlrev_b32 v9, 5, v4")
    k.srd(16, 4, 4*12288, WS_MODP)
    k.srd(24, 4, 0x10000, WS_UT)
    k("s_lshl_b32 s32, s6, 15")
    k("s_lshl_b32 s33, s7, 13")
    k("s_add_u32 s32, s32, s33")
    k("s_add_u32 s33, s32, 4096")
    for st in range(8):
        so = "s32" if st < 4 else "s33"
        k(f"buffer_load_dwordx4 v[{16+4*st}:{16+4*st+3}], v10, s[20:23], {so} offen offset:{(st%4)*1024}")
    k("v_lshlrev_b32 v8, 3, v0")
    k("s_lshl_b32 s29, s7, 9")
    k(f"s_add_u32 s30, s29, {2048*4}")
    k(f"s_add_u32 s31, s29, {1536*4}")
    for p in range(4):
        k(f"buffer_load_dwordx2 v[{64+2*p}:{65+2*p}], v8, s[16:19], s30 offen")
        k(f"buffer_load_dwordx2 v[{72+2*p}:{73+2*p}], v8, s[16:19], s31 offen")
        k("s_add_u32 s30, s30, 12288"); k("s_add_u32 s31, s31, 12288")
    for i in range(4): k(f"v_mov_b32 v{12+i}, 0")
    k("s_barrier")
    k("s_waitcnt vmcnt(0)")
    for b in (64, 72):
        for e in range(2):
            k(f"v_add_f32 v{b+e}, v{b+e}, v{b+2+e}"); k(f"v_add_f32 v{b+4+e}, v{b+4+e}, v{b+6+e}"); k(f"v_add_f32 v{b+e}, v{b+e}, v{b+4+e}")
            round_bf16(k, f"v{b+e}", f"v{b+e}")
    for e in range(2):
        k(f"v_add_f32 v{64+e}, 1.0, v{64+e}")
        round_bf16(k, f"v{64+e}", f"v{64+e}")
    k(f"v_add_u32 v8, {PREP_OFF}, v8")
    k("ds_write_b64 v8, v[64:65]")
    k("ds_write_b64 v8, v[72:73] offset:512")
    k(f"v_add_u32 v9, {PREP_OFF}, v9")
    k("s_waitcnt lgkmcnt(0)")
    for st in range(8):
        pb = 64 + 16*st
        k(f"ds_read_b128 v[{pb}:{pb+3}], v9 offset:{st*64}")
        k(f"ds_read_b128 v[{pb+4}:{pb+7}], v9 offset:{st*64+16}")
        k(f"ds_read_b128 v[{pb+8}:{pb+11}], v9 offset:{512+st*64}")
        k(f"ds_read_b128 v[{pb+12}:{pb+15}], v9 offset:{512+st*64+16}")
        if st % 3 == 2: k("s_waitcnt lgkmcnt(0)")
    k("s_waitcnt lgkmcnt(0)")
    for st in range(8):
        pb = 64 + 16*st
        for i in range(4):
            k(f"v_lshlrev_b32 v{48+2*i}, 16, v{16+4*st+i}")
            k(f"v_and_b32 v{49+2*i}, 0xffff0000, v{16+4*st+i}")
        for jx in range(8):
            k(f"v_fmac_f32 v{12+(jx&1)}, v{48+jx}, v{pb+jx}")
            k(f"v_fmac_f32 v{14+(jx&1)}, v{48+jx}, v{pb+8+jx}")
    k("v_add_f32 v12, v12, v13")
    k("v_add_f32 v13, v14, v15")
    k("v_mov_b32 v14, v12"); k("v_mov_b32 v15, v13")
    k("s_nop 1")
    k("v_permlane32_swap_b32 v12, v14")
    k("v_permlane32_swap_b32 v13, v15")
    k("s_nop 1")
    k("v_add_f32 v12, v12, v14")
    k("v_add_f32 v13, v13, v15")
    k("s_lshl_b32 s11, s7, 14")
    k("s_lshl_b32 s33, s6, 7")
    k("s_add_u32 s11, s11, s33")
    k("s_add_u32 s33, s11, 8192")
    k("v_lshlrev_b32 v14, 2, v0")
    k("s_mov_b32 exec_hi, 0")
    k("buffer_store_dword v12, v14, s[24:27], s11 offen")
    k("buffer_store_dword v13, v14, s[24:27], s33 offen")
    k("s_mov_b64 exec, -1")
    k("s_barrier")
    k(f"s_branch {END}")
    k("PB_PF:")
    sync(k, 1)
    if FUSED: k("s_branch PB_NOZ")
    k("s_cmp_lg_u32 s3, 7")
    k("s_cbranch_scc1 PB_NOZ")
    k("s_cmp_ge_u32 s2, 32")
    k("s_cbranch_scc1 PB_NOZ")
    k.srd(24, 4, 4096, WS_FLAG)
    k("s_lshl_b32 s6, s2, 7")
    k("v_mov_b32 v12, 0")
    k("s_mov_b64 exec, 1")
    k("buffer_store_dword v12, off, s[24:27], s6")
    k("s_mov_b64 exec, -1")
    k("PB_NOZ:")
    k("s_cmp_lg_u32 s3, 6")
    k("s_cbranch_scc1 PB_NOG")
    k("s_cmp_ge_u32 s2, 8")
    k("s_cbranch_scc1 PB_NOG")
    k.srd(16, 4, 4*12288, WS_MODP)
    k.srd(24, 4, 3072*4, WS_MOD)
    k("v_lshlrev_b32 v12, 2, v0")
    k("s_lshl_b32 s6, s2, 8")
    k(f"s_add_u32 s6, s6, {2560*4}")
    k("s_mov_b32 s7, s6")
    for p in range(4):
        k(f"buffer_load_dword v{13+p}, v12, s[16:19], s7 offen")
        k("s_add_u32 s7, s7, 12288")
    k("s_waitcnt vmcnt(0)")
    k("v_add_f32 v13, v13, v14"); k("v_add_f32 v15, v15, v16"); k("v_add_f32 v13, v13, v15")
    round_bf16(k, "v13", "v13")
    k("buffer_store_dword v13, v12, s[24:27], s6 offen")
    k("PB_NOG:")
    k("s_barrier")
    if PB_PREF:
        k("s_lshr_b32 s6, s2, 3")
        k(f"s_mul_i32 s6, s6, {56*1024}")
        k("s_sub_u32 s7, s3, 5")
        k(f"s_mul_i32 s7, s7, {19*1024}")
        k("s_add_u32 s6, s6, s7")
        for i in range(19):
            k(f"buffer_load_dwordx4 v[{16+4*i}:{19+4*i}], v10, s[20:23], s6 offen")
            k("s_add_u32 s6, s6, 1024")
        k("s_waitcnt vmcnt(0)")
    k("s_barrier")
    k(f"s_branch {END}")
    k("PB_IDLE:")
    k("s_barrier")
    k("s_barrier")

PC_STAT = 65536
PC_UT = PC_STAT + 8192
PC_LDS = PC_UT + 2048
def x_dma_setup(k, rt_sgpr):
    k("v_lshrrev_b32 v2, 3, v0")
    k("v_and_b32 v3, 7, v0")
    k("v_bfe_u32 v4, v0, 4, 1")
    k("v_lshlrev_b32 v4, 2, v4")
    k("v_xor_b32 v3, v3, v4")
    k("v_lshlrev_b32 v3, 4, v3")
    k("v_lshl_add_u32 v3, v2, 12, v3")
    k(f"s_lshl_b32 s14, {rt_sgpr}, 7")
    k("v_add_u32 v3, s14, v3")
def x_frag_addr(k):
    k("v_bfe_u32 v5, v0, 2, 2")
    k("v_and_b32 v6, 3, v0")
    k("v_bfe_u32 v7, v0, 4, 1")
    k("v_lshrrev_b32 v12, 5, v0")
    k("v_lshlrev_b32 v13, 3, v12")
    k("v_add_u32 v13, v13, v5")
    k("v_lshlrev_b32 v13, 7, v13")
    k("v_lshl_add_u32 v13, v7, 5, v13")
    k("v_lshl_add_u32 v13, v6, 3, v13")
    k("v_lshrrev_b32 v14, 1, v5")
    k("s_lshr_b32 s39, s3, 2")
    k("v_xor_b32 v14, s39, v14")
    k("v_lshl_add_u32 v8, v14, 6, v13")
    k("v_xor_b32 v9, 64, v8")

def phase_c(k, END):
    k("s_cmp_ge_u32 s2, 224")
    k("s_cbranch_scc1 PC_HELP")
    k("s_and_b32 s11, s2, 31")
    k("s_lshr_b32 s12, s2, 5")
    k("s_lshl_b32 s13, s12, 3")
    k("s_add_u32 s13, s13, s3")
    x_dma_setup(k, "s11")
    k("v_lshlrev_b32 v4, 4, v0")
    k("s_lshl_b32 s36, s3, 15")
    k("s_lshl_b32 s37, s3, 10")
    k("s_lshl_b32 s38, s13, 15")
    k("s_and_b32 s15, s3, 3")
    k("s_lshl_b32 s15, s15, 8")
    k("s_lshl_b32 s40, s12, 10")
    k("s_add_u32 s15, s15, s40")
    k("s_lshr_b32 s40, s3, 2")
    k("s_lshl_b32 s40, s40, 13")
    k("s_add_u32 s15, s15, s40")
    k("v_lshlrev_b32 v10, 2, v0")
    k("s_waitcnt lgkmcnt(0)")
    k.srd(16, 4, 0x200000, WS_X1S)
    k.srd(20, 4, 56*32*1024, WS_W1F)
    k.srd(24, 4, 0x10000, WS_UT)
    WF = 128
    seq = []
    def dma(g):
        k("s_mov_b32 m0, s37")
        k("s_add_u32 s37, s37, 8192")
        k("buffer_load_dwordx4 v3, s[16:19], s36 offen lds")
        k("s_add_u32 s36, s36, 0x40000")
        seq.append(("D", g))
    def wld(kk):
        k(f"buffer_load_dwordx4 v[{WF+4*kk}:{WF+4*kk+3}], v4, s[20:23], s38 offen offset:{(kk%4)*1024}")
        if kk % 4 == 3: k("s_add_u32 s38, s38, 4096")
        seq.append(("W", kk))
    def after(item):
        return len(seq) - 1 - seq.index(item)
    AH = K2_AH
    if FUSED:
        for kk in range(0, AH): wld(kk)
        x_frag_addr(k)
        for i in range(32): k(f"v_mov_b32 v{64+i}, 0")
        sync(k, 2)
        k.fstamp(5)
        for g in range(4): dma(g)
        for dq in range(4):
            k(f"buffer_load_dword v{96+dq}, v10, s[24:27], s15 offen"); seq.append(("U", dq))
            k("s_add_u32 s15, s15, 16384")
        for g in range(4, 8): dma(g)
    else:
        dma(0)
        for kk in range(0, 4): wld(kk)
        dma(1)
        for kk in range(4, 8): wld(kk)
        dma(2); dma(3)
        for dq in range(4):
            k(f"buffer_load_dword v{96+dq}, v10, s[24:27], s15 offen"); seq.append(("U", dq))
            k("s_add_u32 s15, s15, 16384")
        for kk in range(8, AH): wld(kk)
        for g in range(4, 8): dma(g)
    k.srd(28, 4, 64*112*1024, WS_HID)
    k.srd(32, 4, 2048*8, WS_ST2)
    k.srd(48, 4, 4096, (WS_SYNC + 0x2000) if FUSED else WS_FLAG)
    k.srd(44, 4, 16*112*1024, WS_W2F)
    k.stamp(0)
    ACC = 64
    XF = [16, 24, 32]
    if not FUSED:
        x_frag_addr(k)
        for i in range(32): k(f"v_mov_b32 v{ACC+i}, 0")
    def xloads(kk):
        st = kk % 3
        out = []
        for bp in range(2):
            out.append(f"ds_read_b64_tr_b16 v[{XF[st]+4*bp}:{XF[st]+4*bp+1}], v{8+bp} offset:{kk*2048}")
            out.append(f"ds_read_b64_tr_b16 v[{XF[st]+4*bp+2}:{XF[st]+4*bp+3}], v{8+bp} offset:{kk*2048+512}")
        return out
    k(f"s_waitcnt vmcnt({min(after(('W',0)), after(('D',0)))})")
    k("s_barrier")
    k.stamp(1)
    for x in xloads(0): k(x)
    for x in xloads(1): k(x)
    for kk in range(32):
        st = kk % 3
        need = [("W", kk)]
        bar = None
        if kk == 2: bar = ("D", 1)
        if kk == 6: bar = ("D", 3)
        if kk == 14: bar = ("D", 7)
        cnt = after(("W", kk))
        if bar: cnt = min(cnt, after(bar))
        k(f"s_waitcnt vmcnt({cnt}) lgkmcnt({4 if kk < 31 else 0})")
        if kk == 10:
            k(f"s_waitcnt vmcnt({after(('U',3))})")
            k("v_add_f32 v96, v96, v97"); k("v_add_f32 v98, v98, v99"); k("v_add_f32 v96, v96, v98")
            k("s_lshl_b32 s15, s3, 8")
            k(f"s_add_u32 s15, s15, {PC_UT}")
            k("v_add_u32 v97, s15, v10")
            k("ds_write_b32 v97, v96")
            k("s_waitcnt lgkmcnt(0)")
        if bar: k("s_barrier")
        if kk % 4 == 0 and kk > 0: k.stamp(1 + kk//4)
        nxt = xloads(kk+2) if kk+2 < 32 else []
        for bp in range(2):
            k(f"v_mfma_f32_32x32x16_bf16 v[{ACC+16*bp}:{ACC+16*bp+15}], v[{WF+4*kk}:{WF+4*kk+3}], v[{XF[st]+4*bp}:{XF[st]+4*bp+3}], v[{ACC+16*bp}:{ACC+16*bp+15}]")
            for x in nxt[2*bp:2*bp+2]: k(x)
        if kk + AH < 32: wld(kk + AH)
        if kk == 32 - AH:
            k("s_lshl_b32 s15, s11, 7")
            k("buffer_load_dword v100, off, s[48:51], s15 sc1"); seq.append(("F", 0))
        if kk == 32 - AH + 5:
            k(f"s_waitcnt vmcnt({after(('F',0))})")
            k(f"s_mov_b32 s42, {SPIN_MAX}")
            k("PC_POLL:")
            k("v_readfirstlane_b32 s41, v100")
            k("s_cmp_lg_u32 s41, 0")
            k("s_cbranch_scc1 PC_GOT")
            k("s_sub_u32 s42, s42, 1")
            k("s_cbranch_scc1 PC_GOT")
            k("s_sleep 8")
            k("buffer_load_dword v100, off, s[48:51], s15 sc1")
            k("s_waitcnt vmcnt(0)")
            k("s_branch PC_POLL")
            k("PC_GOT:")
            k("v_and_b32 v15, 31, v0")
            k("s_lshl_b32 s15, s11, 6")
            k("s_lshr_b32 s41, s3, 2")
            k("s_lshl_b32 s41, s41, 5")
            k("s_add_u32 s15, s15, s41")
            k("v_add_u32 v15, s15, v15")
            k("v_lshlrev_b32 v15, 3, v15")
            k("v_xor_b32 v11, 0x100, v15")
            k("buffer_load_dwordx2 v[104:105], v15, s[32:35], 0 offen sc1"); seq.append(("S", 0))
            k("buffer_load_dwordx2 v[106:107], v11, s[32:35], 0 offen sc1"); seq.append(("S", 1))
            if PC_PREF:
                k("s_lshr_b32 s15, s2, 3")
                k("s_lshl_b32 s15, s15, 16")
                k("s_lshl_b32 s41, s3, 13")
                k("s_add_u32 s15, s15, s41")
                for i in range(8):
                    k(f"buffer_load_dwordx4 v[{108+4*(i%4)}:{111+4*(i%4)}], v4, s[44:47], s15 offen offset:{(i%4)*1024}"); seq.append(("P", i))
                    if i == 3: k("s_add_u32 s15, s15, 4096")
    k.stamp(9)
    k.fstamp(6)
    k("s_lshl_b32 s15, s3, 7")
    k(f"s_add_u32 s15, s15, {PC_UT}")
    k("v_lshlrev_b32 v14, 4, v12")
    k("v_add_u32 v14, s15, v14")
    for g in range(4):
        k(f"ds_read_b128 v[{160+4*g}:{160+4*g+3}], v14 offset:{g*32}")
        k(f"ds_read_b128 v[{176+4*g}:{176+4*g+3}], v14 offset:{1024+g*32}")
    k(f"s_waitcnt vmcnt({after(('S',1))}) lgkmcnt(0)")
    k.stamp(10)
    for bp in range(2):
        a = ACC + 16*bp
        rs, mn = 104+2*bp, 105+2*bp
        for i in range(16): k(f"v_fma_f32 v{a+i}, -v{mn}, v{160+i}, v{a+i}")
        for i in range(16): k(f"v_fma_f32 v{a+i}, v{a+i}, v{rs}, v{176+i}")
        o = 200 + 8*bp
        for i in range(8): k(f"v_cvt_pk_bf16_f32 v{o+i}, v{a+2*i}, v{a+2*i+1}")
        for i in range(8): k(f"v_pk_max_i16 v{o+i}, v{o+i}, 0")
        k("s_lshr_b32 s15, s3, 2")
        k(f"s_xor_b32 s15, s15, {bp}")
        k("s_lshl_b32 s41, s11, 1")
        k("s_add_u32 s15, s15, s41")
        k(f"s_mul_i32 s15, s15, {112*1024}")
        k("s_lshl_b32 s41, s13, 11")
        k("s_add_u32 s15, s15, s41")
        k(f"buffer_store_dwordx4 v[{o}:{o+3}], v4, s[28:31], s15 offen")
        k(f"buffer_store_dwordx4 v[{o+4}:{o+7}], v4, s[28:31], s15 offen offset:1024")
    k(f"s_branch {END}")

    k("PC_HELP:")
    k("s_sub_u32 s11, s2, 224")
    x_dma_setup(k, "s11")
    k("s_lshl_b32 s36, s3, 15")
    k("s_lshl_b32 s37, s3, 10")
    k("s_waitcnt lgkmcnt(0)")
    sync(k, 2)
    k.srd(16, 4, 0x200000, WS_X1T)
    for g in range(8):
        k("s_mov_b32 m0, s37")
        k("s_add_u32 s37, s37, 8192")
        k("buffer_load_dwordx4 v3, s[16:19], s36 offen lds")
        k("s_add_u32 s36, s36, 0x40000")
    k.srd(32, 4, 0x200000, WS_X1R)
    k.srd(20, 4, 2048*8, WS_ST2)
    k.srd(48, 4, 4096, (WS_SYNC + 0x2000) if FUSED else WS_FLAG)
    x_frag_addr(k)
    k("s_lshl_b32 s15, s3, 13")
    k("v_add_u32 v46, s15, v8")
    k("v_add_u32 v47, s15, v9")
    k("v_and_b32 v54, 31, v0")
    k("v_lshlrev_b32 v54, 3, v54")
    k("v_lshl_add_u32 v54, v12, 9, v54")
    k("s_lshl_b32 s15, s11, 1")
    k("s_lshr_b32 s41, s3, 2")
    k("s_add_u32 s15, s15, s41")
    k("s_lshl_b32 s15, s15, 15")
    k("s_lshl_b32 s41, s3, 12")
    k("s_add_u32 s15, s15, s41")
    k("s_xor_b32 s45, s15, 0x8000")
    k("s_mov_b32 s44, 0x3f803f80")
    for i in range(8): k(f"v_mov_b32 v{60+i}, 0")
    k("s_waitcnt vmcnt(0)")
    k("s_barrier")
    for bp in range(2):
        for s in range(4):
            r = 128 + 16*bp + 4*s
            k(f"ds_read_b64_tr_b16 v[{r}:{r+1}], v{46+bp} offset:{s*2048}")
            k(f"ds_read_b64_tr_b16 v[{r+2}:{r+3}], v{46+bp} offset:{s*2048+512}")
        k("s_waitcnt lgkmcnt(0)")
    for bp in range(2):
        for j in range(16):
            r = 128 + 16*bp + j
            k(f"v_dot2_f32_bf16 v{60+4*bp+(j&1)}, v{r}, s44, v{60+4*bp+(j&1)}")
            k(f"v_dot2_f32_bf16 v{62+4*bp+(j&1)}, v{r}, v{r}, v{62+4*bp+(j&1)}")
    k("s_nop 2")
    for bp in range(2):
        k(f"v_add_f32 v{70+2*bp}, v{60+4*bp}, v{61+4*bp}")
        k(f"v_add_f32 v{71+2*bp}, v{62+4*bp}, v{63+4*bp}")
    k("v_lshlrev_b32 v15, 3, v0")
    k("s_lshr_b32 s41, s3, 2")
    k("s_lshl_b32 s41, s41, 12")
    k("s_lshl_b32 s42, s3, 9")
    k("s_add_u32 s41, s41, s42")
    k(f"s_add_u32 s41, s41, {PC_STAT}")
    k("v_add_u32 v48, s41, v15")
    k("v_xor_b32 v49, 0x1000, v48")
    k("ds_write_b64 v48, v[70:71]")
    k("ds_write_b64 v49, v[72:73]")
    k("s_waitcnt lgkmcnt(0)")
    k("s_barrier")
    k("s_cmp_eq_u32 s3, 0")
    k("s_cbranch_scc1 PC_H0")
    k("PC_HX:")
    for bp in range(2):
        so = "s15" if bp == 0 else "s45"
        for s in range(4):
            r = 128 + 16*bp + 4*s
            off = (s//2)*2048 + (s%2)*1024
            k(f"buffer_store_dwordx2 v[{r}:{r+1}], v54, s[32:35], {so} offen offset:{off}")
            k(f"buffer_store_dwordx2 v[{r+2}:{r+3}], v54, s[32:35], {so} offen offset:{off+256}")
    k(f"s_branch {END}")
    k("PC_H0:")
    k("v_lshrrev_b32 v13, 5, v0")
    k("v_and_b32 v14, 31, v0")
    k("v_lshlrev_b32 v13, 12, v13")
    k("v_lshl_add_u32 v13, v14, 3, v13")
    k(f"v_add_u32 v13, {PC_STAT}, v13")
    for j in range(16):
        k(f"ds_read_b64 v[{16+2*j}:{17+2*j}], v13 offset:{j*256}")
        if j == 14: k("s_waitcnt lgkmcnt(0)")
    k("s_waitcnt lgkmcnt(0)")
    for st in [8, 4, 2, 1]:
        for j in range(st):
            k(f"v_add_f32 v{16+2*j}, v{16+2*j}, v{16+2*(j+st)}")
            k(f"v_add_f32 v{17+2*j}, v{17+2*j}, v{17+2*(j+st)}")
    ln_finish(k, "v16", "v17", "v18", "v19", ["v20", "v21"])
    k("s_lshl_b32 s16, s11, 9")
    k("v_lshlrev_b32 v13, 3, v0")
    k("buffer_store_dwordx2 v[18:19], v13, s[20:23], s16 offen sc1")
    k("s_waitcnt vmcnt(0)")
    k("s_lshl_b32 s16, s11, 7")
    k("v_mov_b32 v13, 1")
    k("s_mov_b64 exec, 1")
    k("buffer_store_dword v13, off, s[48:51], s16 sc1")
    k("s_mov_b64 exec, -1")
    k("s_branch PC_HX")

PD_OUT = 4*3*4096
PD_LDS = PD_OUT + 8192
def phase_d(k, END):
    k("s_cmp_ge_u32 s3, 4")
    k("s_cbranch_scc1 PD_IDLE")
    k(f"s_load_dwordx2 s[6:7], s[0:1], {A_OUT}")
    k("s_and_b32 s11, s2, 31")
    k("s_lshr_b32 s12, s2, 5")
    k("v_lshlrev_b32 v2, 4, v0")
    k(f"s_mul_i32 s13, s12, {2*112*1024}")
    k("v_add_u32 v3, s13, v2")
    k(f"v_add_u32 v4, {112*1024}, v3")
    k(f"s_mul_i32 s13, s11, {2*112*1024}")
    k("v_add_u32 v5, s13, v2")
    k(f"v_add_u32 v6, {112*1024}, v5")
    k(f"s_mul_i32 s14, s3, {28*1024}")
    k("s_waitcnt lgkmcnt(0)")
    k.srd(16, 4, 16*112*1024, WS_W2F)
    k.srd(20, 4, 64*112*1024, WS_HID)
    ACC = 16; RING = 80; P = K3_P
    seq = []
    def after(item): return len(seq) - 1 - seq.index(item)
    sA, sB = "s14", "s41"
    k("s_mov_b32 s41, s14")
    def issueA(step):
        sl = RING + 16*(step % P)
        k(f"buffer_load_dwordx4 v[{sl}:{sl+3}], v3, s[16:19], s14 offen"); seq.append(("A0", step))
        k(f"buffer_load_dwordx4 v[{sl+4}:{sl+7}], v4, s[16:19], s14 offen"); seq.append(("A1", step))
        k("s_add_u32 s14, s14, 1024")
    def issueB(step):
        sl = RING + 16*(step % P)
        k(f"buffer_load_dwordx4 v[{sl+8}:{sl+11}], v5, s[20:23], s41 offen"); seq.append(("B0", step))
        k(f"buffer_load_dwordx4 v[{sl+12}:{sl+15}], v6, s[20:23], s41 offen"); seq.append(("B1", step))
        k("s_add_u32 s41, s41, 1024")
    if FUSED:
        for st_ in range(P): issueA(st_)
        k.srd(24, 4, 0x200000, WS_X1R)
        k.srd(28, 6, 0x200000)
        k.srd(32, 4, 3072*4, WS_MOD)
        k("s_lshr_b32 s15, s3, 1")
        k("s_and_b32 s36, s3, 1")
        k("v_and_b32 v7, 31, v0")
        k("v_lshrrev_b32 v8, 5, v0")
        k("s_lshl_b32 s37, s11, 1")
        k("s_add_u32 s37, s37, s36")
        k("s_lshl_b32 s37, s37, 15")
        k("s_lshl_b32 s38, s12, 1")
        k("s_add_u32 s38, s38, s15")
        k("s_lshl_b32 s39, s38, 11")
        k("s_add_u32 s37, s37, s39")
        k("v_lshlrev_b32 v10, 3, v0")
        k("v_lshlrev_b32 v9, 4, v8")
        k("s_lshl_b32 s38, s38, 7")
        k(f"s_add_u32 s38, s38, {2560*4}")
        for g in range(4):
            k(f"buffer_load_dwordx4 v[{216+4*g}:{216+4*g+3}], v9, s[32:35], s38 offen offset:{g*32}"); seq.append(("G", g))
        for i in range(64): k(f"v_mov_b32 v{ACC+i}, 0")
        sync(k, 3, may_be_7=False)
        k.fstamp(8)
        for st_ in range(2): issueB(st_)
        for g in range(4):
            k(f"buffer_load_dwordx2 v[{208+2*g}:{208+2*g+1}], v10, s[24:27], s37 offen offset:{g*512}"); seq.append(("X", g))
        for st_ in range(2, P): issueB(st_)
    else:
        for st_ in range(2): issueA(st_); issueB(st_)
        k.srd(24, 4, 0x200000, WS_X1R)
        k.srd(28, 6, 0x200000)
        k.srd(32, 4, 3072*4, WS_MOD)
        k("s_lshr_b32 s15, s3, 1")
        k("s_and_b32 s36, s3, 1")
        k("v_and_b32 v7, 31, v0")
        k("v_lshrrev_b32 v8, 5, v0")
        k("s_lshl_b32 s37, s11, 1")
        k("s_add_u32 s37, s37, s36")
        k("s_lshl_b32 s37, s37, 15")
        k("s_lshl_b32 s38, s12, 1")
        k("s_add_u32 s38, s38, s15")
        k("s_lshl_b32 s39, s38, 11")
        k("s_add_u32 s37, s37, s39")
        k("v_lshlrev_b32 v10, 3, v0")
        for g in range(4):
            k(f"buffer_load_dwordx2 v[{208+2*g}:{208+2*g+1}], v10, s[24:27], s37 offen offset:{g*512}"); seq.append(("X", g))
        k("v_lshlrev_b32 v9, 4, v8")
        k("s_lshl_b32 s38, s38, 7")
        k(f"s_add_u32 s38, s38, {2560*4}")
        for g in range(4):
            k(f"buffer_load_dwordx4 v[{216+4*g}:{216+4*g+3}], v9, s[32:35], s38 offen offset:{g*32}"); seq.append(("G", g))
        for st_ in range(2, P): issueA(st_); issueB(st_)
        for i in range(64): k(f"v_mov_b32 v{ACC+i}, 0")
    k.stamp(0)
    for s in range(28):
        k(f"s_waitcnt vmcnt({min(after(('A1', s)), after(('B1', s)))})")
        if s == 0: k.stamp(1)
        sl = RING + 16*(s % P)
        for a in range(2):
            for b in range(2):
                c = ACC + 16*(a*2+b)
                k(f"v_mfma_f32_32x32x16_bf16 v[{c}:{c+15}], v[{sl+4*a}:{sl+4*a+3}], v[{sl+8+4*b}:{sl+8+4*b+3}], v[{c}:{c+15}]")
        if s + P < 28: issueA(s + P); issueB(s + P)
    k.fstamp(9)
    k.stamp(2)
    k(f"s_mul_i32 s39, s3, {3*4096}")
    k("v_add_u32 v11, s39, v2")
    for t in range(4):
        k(f"s_sub_u32 s39, s3, {t+1}")
        k("s_and_b32 s39, s39, 3")
        k(f"s_add_u32 s39, s39, {3*t}")
        k("s_lshl_b32 s39, s39, 12")
        k(f"v_add_u32 v{12+t}, s39, v2")
    for t in range(4):
        k(f"s_cmp_eq_u32 s3, {t}")
        k(f"s_cbranch_scc1 PD_SKIP{t}")
        for qd in range(4):
            k(f"ds_write_b128 v{12+t}, v[{ACC+16*t+4*qd}:{ACC+16*t+4*qd+3}] offset:{qd*1024}")
        k(f"PD_SKIP{t}:")
    for t in range(4):
        k(f"s_cmp_eq_u32 s3, {t}")
        k(f"s_cbranch_scc0 PD_MV{t}")
        for i in range(16): k(f"v_mov_b32 v{80+i}, v{ACC+16*t+i}")
        k(f"PD_MV{t}:")
    for g in range(4):
        k(f"v_lshlrev_b32 v{150+4*g}, 16, v{208+2*g}")
        k(f"v_and_b32 v{151+4*g}, 0xffff0000, v{208+2*g}")
        k(f"v_lshlrev_b32 v{152+4*g}, 16, v{208+2*g+1}")
        k(f"v_and_b32 v{153+4*g}, 0xffff0000, v{208+2*g+1}")
    k("s_waitcnt lgkmcnt(0)")
    k("s_barrier")
    for sidx in range(3):
        for qd in range(4):
            r = 96 + 16*sidx + 4*qd
            k(f"ds_read_b128 v[{r}:{r+3}], v11 offset:{sidx*4096+qd*1024}")
    for sidx in range(3):
        k(f"s_waitcnt lgkmcnt({8-4*sidx})")
        for i in range(16): k(f"v_add_f32 v{80+i}, v{80+i}, v{96+16*sidx+i}")
    k.stamp(3)
    k("s_lshl_b32 s39, s36, 5")
    k("v_add_u32 v13, s39, v7")
    k("v_and_b32 v14, 7, v13")
    k("s_lshl_b32 s39, s15, 2")
    k("v_xor_b32 v14, s39, v14")
    k("v_lshlrev_b32 v13, 7, v13")
    k("v_lshl_add_u32 v13, v8, 3, v13")
    k(f"v_add_u32 v13, {PD_OUT}, v13")
    for g in range(4):
        for r in range(4):
            k(f"v_fma_f32 v{150+4*g+r}, v{80+4*g+r}, v{216+4*g+r}, v{150+4*g+r}")
        k(f"v_cvt_pk_bf16_f32 v{170+2*g}, v{150+4*g}, v{151+4*g}")
        k(f"v_cvt_pk_bf16_f32 v{170+2*g+1}, v{152+4*g}, v{153+4*g}")
        k(f"v_xor_b32 v15, {g}, v14")
        k("v_lshl_add_u32 v15, v15, 4, v13")
        k(f"ds_write_b64 v15, v[{170+2*g}:{170+2*g+1}]")
    k("v_lshrrev_b32 v13, 3, v0")
    k("s_lshl_b32 s39, s3, 4")
    k("v_add_u32 v13, s39, v13")
    k("v_and_b32 v14, 7, v0")
    k("v_and_b32 v15, 7, v13")
    k("v_xor_b32 v15, v14, v15")
    k("v_lshlrev_b32 v15, 4, v15")
    k("v_lshl_add_u32 v15, v13, 7, v15")
    k(f"v_add_u32 v15, {PD_OUT}, v15")
    k("s_lshl_b32 s39, s11, 6")
    k("v_add_u32 v13, s39, v13")
    k("v_lshlrev_b32 v13, 10, v13")
    k("v_lshl_add_u32 v13, v14, 4, v13")
    k("s_lshl_b32 s39, s12, 7")
    k("s_add_u32 s40, s39, 8192")
    k("s_waitcnt lgkmcnt(0)")
    k("s_barrier")
    k("ds_read_b128 v[80:83], v15")
    k("ds_read_b128 v[84:87], v15 offset:1024")
    k("s_waitcnt lgkmcnt(0)")
    k("buffer_store_dwordx4 v[80:83], v13, s[28:31], s39 offen")
    k("buffer_store_dwordx4 v[84:87], v13, s[28:31], s40 offen")
    k(f"s_branch {END}")
    k("PD_IDLE:")
    sync(k, 3)
    k("s_barrier")
    k("s_barrier")

def gen_kernel(name, phase, tag, vgpr, first=False, last=False):
    k = K()
    header(k, name)
    END = f"{tag}_END"
    entry(k, END, first)
    phase(k, END)
    k(f"{END}:")
    k("s_endpgm")
    if last: k("CODE_END:")
    return k.text() + kd(name, vgpr)

def gen_fused(name):
    k = K()
    header(k, name)
    entry(k, "F_END", first=True)
    phase_a(k, "PA_END")
    k("PA_END:")
    k.fstamp(0)
    arrive(k, 1)
    phase_b(k, "PB_END")
    k("PB_END:")
    k.fstamp(4)
    arrive(k, 2)
    phase_c(k, "PC_END")
    k("PC_END:")
    k.fstamp(7)
    arrive(k, 3)
    phase_d(k, "PD_END")
    k("PD_END:")
    k("F_END:")
    k("s_endpgm")
    k("CODE_END:")
    return k.text() + kd(name, 256, sgpr=102)

def add_prof(text, name, idx):
    out = []
    for ln in text.split("\n"):
        st = ln.strip()
        if st == name + ":":
            out.append(ln)
            out.append("    s_memrealtime s[96:97]")
            out.append("    s_memtime s[98:99]")
            out.append("    v_readfirstlane_b32 s100, v0")
            out.append("    s_mov_b32 s101, s2")
        elif st == "s_endpgm":
            out.append("    s_branch PROF_EXIT_%d" % idx)
        elif st.startswith(";STAMP"):
            i = int(st.split()[1])
            out.append("    s_memrealtime s[%d:%d]" % (72+2*i, 73+2*i))
        elif st.startswith(".section .rodata"):
            out.append("PROF_EXIT_%d:" % idx)
            out.append("    s_load_dwordx2 s[12:13], s[0:1], %d" % A_WS)
            out.append("    s_waitcnt vmcnt(0) lgkmcnt(0)")
            out.append("    s_memrealtime s[10:11]")
            out.append("    s_memtime s[6:7]")
            out.append("    s_waitcnt lgkmcnt(0)")
            out.append("    s_sub_u32 s59, s6, s98")
            out.append("    s_mov_b64 exec, 1")
            out.append("    s_lshr_b32 s100, s100, 6")
            out.append("    s_lshl_b32 s101, s101, 3")
            out.append("    s_add_u32 s100, s100, s101")
            out.append("    s_lshl_b32 s100, s100, 6")
            out.append("    s_add_u32 s100, s100, %d" % (WS_PROF + idx*0x40000))
            out.append("    s_add_u32 s16, s12, s100")
            out.append("    s_addc_u32 s17, s13, 0")
            out.append("    s_mov_b32 s18, 64")
            out.append("    s_mov_b32 s19, 0x20000")
            out.append("    v_mov_b32 v0, s96")
            out.append("    v_mov_b32 v1, s10")
            out.append("    v_mov_b32 v2, 0")
            out.append("    buffer_store_dwordx2 v[0:1], v2, s[16:19], 0 offen")
            for i in range(12):
                out.append("    v_mov_b32 v0, s%d" % (72+2*i))
                out.append("    buffer_store_dword v0, v2, s[16:19], 0 offen offset:%d" % (8+4*i))
                out.append("    s_nop 1")
            out.append("    v_mov_b32 v0, s59")
            out.append("    buffer_store_dword v0, v2, s[16:19], 0 offen offset:56")
            out.append("    s_waitcnt vmcnt(0)")
            out.append("    s_endpgm")
            out.append(ln)
        else:
            out.append(ln)
    return "\n".join(out)

HEADER_COMMENTS = """; adaLN + H3 long-conv + FFN (generated by dev/gen2.py)
; Kernarg: q0 k8 v16 shift_k24 ssm_k32 ssm_D40 B_x48 w1 56 w2 64 c72 w_mod80 out88 dbg96 ws104
"""
BLK = {"prep_kernel":512, "conv_kernel":512, "gemm1_kernel":512, "gemm2_kernel":512}
def build(prof=False):
    global HS, HL
    _uid[0] = 0
    if FUSED:
        name = NAME + "_kernel"
        lds = max(PA_LDS, PB_LDS, PC_LDS, PD_LDS)
        BLK[name] = 512
        s = HEADER_COMMENTS + f"; @launch grid=(256,1,1) block=(512,1,1) lds={lds}\n"
        s += '.amdgcn_target "amdgcn-amd-amdhsa--gfx950"\n.text\n'
        t = gen_fused(name)
        if prof: t = add_prof(t, name, 0)
        return s + t, [(name, 256, lds)]
    names = ["prep_kernel", "conv_kernel", "gemm1_kernel", "gemm2_kernel"]
    grids = [256, 256, 256, 256]
    ldss = [PA_LDS, PB_LDS, PC_LDS, PD_LDS]
    s = HEADER_COMMENTS
    for n, g, l in zip(names, grids, ldss):
        s += f"; @launch kernel={n} grid=({g},1,1) block=({BLK[n]},1,1) lds={l}\n"
    s += '.amdgcn_target "amdgcn-amd-amdhsa--gfx950"\n.text\n'
    parts = [gen_kernel(names[0], phase_a, "PA", 144, first=True), gen_kernel(names[1], phase_b, "PB", 248),
             gen_kernel(names[2], phase_c, "PC", 256), gen_kernel(names[3], phase_d, "PD", 240, last=True)]
    if prof: parts = [add_prof(p, n, i) for i, (p, n) in enumerate(zip(parts, names))]
    s += "".join(parts)
    return s, list(zip(names, grids, ldss))

if __name__ == "__main__":
    s, _ = build()
    out = sys.argv[1] if len(sys.argv) > 1 else f"cdna_kernels/{NAME}.s"
    open(out, "w").write(s)
    print("wrote", out, len(s), "bytes")
```

```python
import importlib, sys
import gen5 as gen
A_DBG = gen.A_DBG
def instr(text, name, idx):
    out = []
    for ln in text.split("\n"):
        st = ln.strip()
        if st == name + ":":
            out.append(ln)
            out.append("    s_memrealtime s[96:97]")
        elif st == "s_endpgm":
            out.append("    s_branch ST_EXIT")
        elif st.startswith(";STAMP"):
            i = int(st.split()[1])
            out.append("    s_memrealtime s[%d:%d]" % (72+2*i, 73+2*i))
        elif st.startswith(".section .rodata"):
            out.append("ST_EXIT:")
            out.append("    s_cmp_ge_u32 s2, 256")
            out.append("    s_cbranch_scc1 ST_SKIP")
            out.append("    s_load_dwordx2 s[12:13], s[0:1], %d" % A_DBG)
            out.append("    s_waitcnt vmcnt(0) lgkmcnt(0)")
            out.append("    s_memrealtime s[10:11]")
            out.append("    s_mov_b32 s16, s12")
            out.append("    s_mov_b32 s17, s13")
            out.append("    s_mov_b32 s18, 256")
            out.append("    s_mov_b32 s19, 0x20000")
            out.append("    s_waitcnt lgkmcnt(0)")
            out.append("    s_cmp_lg_u32 s3, 0")
            out.append("    s_cbranch_scc1 ST_SKIP")
            out.append("    s_and_b32 s9, s2, 15")
            out.append("    s_cmp_lg_u32 s9, 0")
            out.append("    s_cbranch_scc1 ST_SKIP")
            out.append("    s_mov_b64 exec, 1")
            out.append("    s_not_b32 s96, s96")
            out.append("    v_mov_b32 v0, s96")
            out.append("    v_mov_b32 v2, 0")
            out.append("    buffer_atomic_umax v0, v2, s[16:19], 0 offen offset:32")
            out.append("    v_mov_b32 v1, s10")
            out.append("    buffer_atomic_umax v1, v2, s[16:19], 0 offen offset:36")
            for j in range(10):
                out.append("    v_mov_b32 v1, s%d" % (72+2*j))
                out.append("    buffer_atomic_umax v1, v2, s[16:19], 0 offen offset:%d" % (40+4*j))
                out.append("    s_nop 1")
            out.append("    s_waitcnt vmcnt(0)")
            out.append("ST_SKIP:")
            out.append("    s_endpgm")
            out.append(ln)
        else: out.append(ln)
    return "\n".join(out)
def meas_kernel(expr, M):
    k = gen.K(); gen.header(k, "meas_kernel")
    k("s_load_dwordx2 s[4:5], s[0:1], %d" % A_DBG)
    k("s_waitcnt lgkmcnt(0)")
    k("s_sub_u32 s4, s4, 512")
    k("s_subb_u32 s5, s5, 0")
    k("s_load_dwordx4 s[8:11], s[4:5], 32")
    k("s_load_dwordx8 s[12:19], s[4:5], 48")
    k("s_waitcnt lgkmcnt(0)")
    k("s_not_b32 s8, s8")
    k(expr)
    k(f"s_mul_i32 s20, s20, {M}")
    k("s_min_u32 s20, s20, 100000")
    k("s_memrealtime s[22:23]")
    k("s_waitcnt lgkmcnt(0)")
    k("MSP:")
    k("s_memrealtime s[24:25]")
    k("s_waitcnt lgkmcnt(0)")
    k("s_sub_u32 s21, s24, s22")
    k("s_cmp_lt_u32 s21, s20")
    k("s_cbranch_scc1 MSP")
    k("s_endpgm")
    return k.text() + gen.kd("meas_kernel", 8)
def build(fname, q, M=8, **opts):
    importlib.reload(gen)
    for a, b in opts.items(): setattr(gen, a, b)
    gen.add_prof = instr
    s, l = gen.build(prof=True)
    name, g, lds = l[0]
    lines = s.split("\n")
    idx = [i for i,x in enumerate(lines) if x.startswith("; @launch")][0]
    lines[idx] = f"; @launch kernel={name} grid=(256,1,1) block=(512,1,1) lds={lds}"
    lines[idx+1:idx+1] = ["; @launch kernel=meas_kernel grid=(1,1,1) block=(64,1,1) lds=0"]
    reg = {"end": "s9", "A_end": "s10", "sync1": "s11", "B_ready": "s12", "B_loop": "s13", "B_end": "s14", "sync2": "s15", "C_loop": "s16", "C_end": "s17", "sync3": "s18", "D_loop": "s19"}
    expr = "s_mov_b32 s20, 0" if q == "zero" else f"s_sub_u32 s20, {reg[q]}, s8"
    open(f"cdna_kernels/{fname}.s","w").write("\n".join(lines) + meas_kernel(expr, M))
if __name__ == "__main__":
    for spec in sys.argv[1:]:
        name, _, rest = spec.partition(":")
        opts = {}; q = "end"
        for kv in filter(None, rest.split(",")):
            a, b = kv.split("=")
            if a == "Q": q = b; continue
            opts[a] = b if not b.lstrip("-").isdigit() else int(b)
        build(name, q, **opts); print(name, q, opts)
```

```python
import sys
NAME = "adaLN_cond__ssm_conv_h3__dense_activation_relu__prompt"
A_Q, A_K, A_V, A_SHK, A_SSMK, A_SSMD, A_BX, A_W1, A_W2, A_C, A_WMOD, A_OUT, A_DBG, A_WS = [8*i for i in range(14)]

WS_KVT = 0x000000
WS_QT  = 0x200000
WS_ST1 = 0x400000
WS_MOD = 0x404000
WS_UT  = 0x410000
WS_X1T = 0x500000
WS_X1R = 0x700000
WS_W1F = 0x900000
WS_W2F = 0xB00000
WS_HID = 0xD00000
WS_X1S = 0x1500000
WS_MODP = 0x440000
WS_FLAG = 0x430000
WS_ST2 = 0x420000
WS_PROF = 0x3000000

NT = ""
CODE_PF = 0
FUSED = 1
HS = ""
HL = ""
WS_SYNC = 0x438000
SPIN_MAX = 200000
GRAN = 1
PB_PREF2 = 0
LOAD_SC1 = 1
ORDERA = 1
PAIRSYNC = 1
W2STAGE = 1
ZK0 = 20
W2RAW = 1
W2S2 = 0
RAWPRE = 1
W7LATE = 0
CPRIO = 1
FILLI = 0
NOPK = 3
WBL2_1 = 0
WBL2_3 = 0
WBL2 = ()
OUTF = ""
ZSTEP = 2
CONVPRIO = 0
TILE_RELOAD = 0
POLL2_ = 0
ARR2BAR = 0
POLL2 = 1
W2_IN_B = 1
PC_PREF3 = 0
PD_RELOAD = 0
PD_PREFW = 0
DETAIL = ""
DBGBAR = 1
X_NOTILE = 0
X_NOMOD = 0
X_NOROLE = 0
K2_AH = 12
K2_PREF = 0
PB_PREF = 1
PC_PREF = 1
K3_P = 8

class K:
    def __init__(self): self.l = []; self.srdl = []; self.kind = {}; self.plainst = False
    def __call__(self, s=""):
        import re
        for x in s.split("\n"):
            x = x.strip()
            if not x: continue
            if FUSED and x.startswith(("buffer_load", "buffer_store") if LOAD_SC1 else ("buffer_store",)) and " sc1" not in x and not (self.plainst and x.startswith("buffer_store")):
                m = re.search(r"s\[(\d+):\d+\]", x)
                if self.kind.get(int(m.group(1))) == "ws":
                    x = x[:-4] + " sc1 lds" if x.endswith(" lds") else x + " sc1"
            if x.endswith(":") or x.startswith(";") or x.startswith("."): self.l.append(x)
            else: self.l.append("    " + x)
    def text(self):
        self.check()
        return "\n".join(self.l) + "\n"
    def check(self):
        import re
        last_write = {}
        srd_lines = set(self.srdl)
        for n, ln in enumerate(self.l):
            t = ln.strip()
            if t.startswith(";") or t.endswith(":") or t.startswith("."): continue
            m = re.search(r"s\[(\d+):(\d+)\]", t) if t.startswith("buffer_") else None
            if m:
                for r in range(int(m.group(1)), int(m.group(2))+1):
                    w = last_write.get(r)
                    if w is None or not w[2]:
                        print(f"SRD-CHECK: line {n}: '{t}' uses s{r} last written by: {w}", file=sys.stderr)
            op = t.split()[0]
            if op.startswith("s_") and not op.startswith(("s_cmp", "s_cbranch", "s_branch", "s_waitcnt", "s_barrier", "s_nop", "s_endpgm", "s_sleep", "s_setprio")) or op.startswith(("v_readfirstlane", "v_readlane")) or op.startswith("v_cmp"):
                d = t.split()[1].rstrip(",")
                m2 = re.match(r"s\[(\d+):(\d+)\]", d); m1 = re.match(r"s(\d+)$", d)
                regs = range(int(m2.group(1)), int(m2.group(2))+1) if m2 else ([int(m1.group(1))] if m1 else [])
                for r in regs: last_write[r] = (n, t, n in srd_lines)
    def stamp(self, i):
        if not FUSED: self(f";STAMP {i}")
    def fstamp(self, i):
        if FUSED and not DETAIL: self(f";STAMP {i}")
    def dstamp(self, ph, i):
        if FUSED and DETAIL == ph: self(f";STAMP {i}")
    def srd(self, d, p, size, off=0):
        n0 = len(self.l)
        self.srdl += [n0, n0+1, n0+2, n0+3]
        self.kind[d] = "ws" if p == 4 else "in"
        if off:
            self(f"s_add_u32 s{d}, s{p}, {off:#x}")
            self(f"s_addc_u32 s{d+1}, s{p+1}, 0")
        else:
            self(f"s_mov_b32 s{d}, s{p}")
            self(f"s_mov_b32 s{d+1}, s{p+1}")
        self(f"s_mov_b32 s{d+2}, {size:#x}")
        self(f"s_mov_b32 s{d+3}, 0x20000")

def kd(name, vgpr, sgpr=102, accum=None):
    if accum is None: accum = (vgpr + 3)//4*4
    return f"""
.section .rodata,"a"
.p2align 6
.amdhsa_kernel {name}
  .amdhsa_next_free_vgpr {vgpr}
  .amdhsa_next_free_sgpr {sgpr}
  .amdhsa_accum_offset {accum}
  .amdhsa_group_segment_fixed_size 0
  .amdhsa_kernarg_size 112
  .amdhsa_user_sgpr_count 2
  .amdhsa_user_sgpr_kernarg_segment_ptr 1
  .amdhsa_system_sgpr_workgroup_id_x 1
  .amdhsa_float_denorm_mode_32 3
  .amdhsa_float_denorm_mode_16_64 3
.end_amdhsa_kernel
.text
"""
def header(k, name):
    k(f".globl {name}"); k(".p2align 8"); k(f".type {name},@function"); k(f"{name}:")

def entry(k, end, first=False):
    if first and CODE_PF:
        k("s_cmp_ge_u32 s2, 16")
        k("s_cbranch_scc1 CPF_DONE")
        k("s_getpc_b64 s[6:7]")
        k("CPF_PC:")
        k("v_lshlrev_b32 v1, 7, v0")
        k("v_min_u32 v1, (CODE_END - CPF_PC - 4), v1")
        k(f"global_load_dword v143, v1, s[6:7] {NT}")
        k("CPF_DONE:")
    k("s_cmp_ge_u32 s2, 256")
    k(f"s_cbranch_scc1 {end}")
    k(f"s_load_dwordx2 s[4:5], s[0:1], {A_WS}")
    if FUSED: k(f"s_load_dwordx2 s[70:71], s[0:1], {A_DBG}")
    k("v_lshrrev_b32 v1, 6, v0")
    k("v_and_b32 v0, 63, v0")
    k("s_nop 0")
    k("v_readfirstlane_b32 s3, v1")

_uid = [0]
def uid():
    _uid[0] += 1
    return _uid[0]

def arrive(k, which):
    if not FUSED: return
    k("s_waitcnt vmcnt(0) lgkmcnt(0)")
    if which == DBGBAR: k(";STAMP 10")
    k("s_barrier")
    if which == DBGBAR: k(";STAMP 11")
    u = uid()
    k("s_cmp_lg_u32 s3, 7")
    k(f"s_cbranch_scc1 ARS{u}")
    if which in WBL2:
        k("buffer_wbl2 sc1")
        k("s_waitcnt vmcnt(0)")
    k("v_mov_b32 v1, 1")
    k("s_mov_b64 exec, 1")
    if which == 1:
        k(f"s_mov_b32 s69, {SPIN_MAX}")
        k("s_mov_b64 exec, 0xff")
        k("v_lshlrev_b32 v112, 2, v0")
        k(f"INI{u}:")
        k("v_cmp_eq_u32 vcc, 0, v111")
        k("s_cmp_eq_u64 vcc, 0")
        k(f"s_cbranch_scc1 INJ{u}")
        k("buffer_load_dword v111, v112, s[60:63], 0 offen sc1")
        k("s_waitcnt vmcnt(0)")
        k("s_sub_u32 s69, s69, 1")
        k(f"s_cbranch_scc0 INI{u}")
        k(f"INJ{u}:")
        k("s_mov_b64 exec, 1")
    if which in (1, 2):
        k("s_and_b32 s68, s2, 7")
        k("s_lshl_b32 s68, s68, 8")
        if which == 2: k("s_add_u32 s68, s68, 0x800")
        if which == DBGBAR: k.dstamp("S", 0)
        k("buffer_atomic_add v1, off, s[64:67], s68 sc0 sc1")
    else:
        k("s_and_b32 s68, s2, 31")
        k("s_lshl_b32 s68, s68, 7")
        k("s_add_u32 s68, s68, 0x1000")
        k("buffer_atomic_add v1, off, s[64:67], s68 sc1")
    k("s_mov_b64 exec, -1")
    k(f"ARS{u}:")
    if ARR2BAR: k("s_barrier")
    if which in (1, 2):
        k("s_cmp_lg_u32 s3, 7")
        k(f"s_cbranch_scc1 ARR{u}")
        k("s_waitcnt vmcnt(0)")
        if which == DBGBAR: k.dstamp("S", 1)
        k("v_readfirstlane_b32 s69, v1")
        k("s_cmp_lg_u32 s69, 31")
        k(f"s_cbranch_scc1 ARR{u}")
        k("v_mov_b32 v1, 1")
        k("s_mov_b64 exec, 1")
        k("buffer_store_dword v1, off, s[64:67], s68 offset:128 sc1")
        k("s_mov_b64 exec, -1")
        k(f"ARR{u}:")

def sync(k, which, may_be_7=True):
    if not FUSED: return
    if may_be_7:
        u = uid()
        k("s_cmp_lg_u32 s3, 7")
        k(f"s_cbranch_scc1 SYN{u}")
        k(f"s_mov_b32 s69, {SPIN_MAX}")
        if which == DBGBAR: k.dstamp("S", 2)
        if which in (1, 2):
            k("v_lshlrev_b32 v252, 8, v0")
            k("s_mov_b64 exec, 0xff")
            off = 0x80 if which == 1 else 0x880
            if POLL2:
                k(f"buffer_load_dword v253, v252, s[64:67], 0 offen offset:{off} sc1")
                k(f"POL{u}:")
                k(f"s_sleep {POLL2}")
                k(f"buffer_load_dword v254, v252, s[64:67], 0 offen offset:{off} sc1")
                k("s_waitcnt vmcnt(1)")
                k("v_cmp_eq_u32 vcc, 0, v253")
                k("s_cmp_eq_u64 vcc, 0")
                k(f"s_cbranch_scc1 GOT{u}")
                k(f"s_sleep {POLL2}")
                k(f"buffer_load_dword v253, v252, s[64:67], 0 offen offset:{off} sc1")
                k("s_waitcnt vmcnt(1)")
                k("v_cmp_eq_u32 vcc, 0, v254")
                k("s_cmp_eq_u64 vcc, 0")
                k(f"s_cbranch_scc1 GOT{u}")
            else:
                k(f"POL{u}:")
                k(f"buffer_load_dword v253, v252, s[64:67], 0 offen offset:{off} sc1")
                k("s_waitcnt vmcnt(0)")
                k("v_cmp_eq_u32 vcc, 0, v253")
                k("s_cmp_eq_u64 vcc, 0")
                k(f"s_cbranch_scc1 GOT{u}")
        else:
            k("s_and_b32 s68, s2, 31")
            k("s_lshl_b32 s68, s68, 7")
            k("s_add_u32 s68, s68, 0x1000")
            k("s_mov_b64 exec, 1")
            k(f"POL{u}:")
            k("buffer_load_dword v253, off, s[64:67], s68 sc1")
            k("s_waitcnt vmcnt(0)")
            k("v_cmp_gt_u32 vcc, 8, v253")
            k("s_cmp_eq_u64 vcc, 0")
            k(f"s_cbranch_scc1 GOT{u}")
        k("s_sub_u32 s69, s69, 1")
        k(f"s_cbranch_scc0 POL{u}")
        k(f"GOT{u}:")
        if which == DBGBAR: k.dstamp("S", 3)
        k("s_mov_b64 exec, -1")
        k(f"SYN{u}:")
    k("s_barrier")

LSYNC = 76800
def lds_addr(k, off, chreg=None):
    if chreg:
        k(f"s_lshl_b32 s68, {chreg}, 2")
        k(f"s_add_u32 s68, s68, {LSYNC + off}")
        k("v_mov_b32 v250, s68")
    else:
        k(f"v_mov_b32 v250, {LSYNC + off}")
def lds_arrive_last(k, off, n, not_last):
    lds_addr(k, off)
    k("v_mov_b32 v251, 1")
    k("s_mov_b64 exec, 1")
    k("ds_add_rtn_u32 v251, v250, v251")
    k("s_waitcnt lgkmcnt(0)")
    k("v_readfirstlane_b32 s68, v251")
    k("s_mov_b64 exec, -1")
    k(f"s_cmp_lg_u32 s68, {n-1}")
    k(f"s_cbranch_scc1 {not_last}")
def lds_wait(k, n):
    u = uid()
    k(f"s_mov_b32 s69, {SPIN_MAX}")
    k(f"LW{u}:")
    k("ds_read_b32 v251, v250")
    k("s_waitcnt lgkmcnt(0)")
    k("v_readfirstlane_b32 s68, v251")
    k(f"s_cmp_ge_u32 s68, {n}")
    k(f"s_cbranch_scc1 LX{u}")
    k("s_sleep 1")
    k("s_sub_u32 s69, s69, 1")
    k(f"s_cbranch_scc0 LW{u}")
    k(f"LX{u}:")
def lds_sync(k, off, n, chreg=None):
    lds_addr(k, off, chreg)
    k("v_mov_b32 v251, 1")
    k("s_mov_b64 exec, 1")
    k("ds_add_u32 v250, v251")
    k("s_mov_b64 exec, -1")
    lds_wait(k, n)
def lds_set(k, off):
    lds_addr(k, off)
    k("v_mov_b32 v251, 1")
    k("s_mov_b64 exec, 1")
    k("ds_write_b32 v250, v251")
    k("s_mov_b64 exec, -1")
def round_bf16(k, dst, src):
    k(f"v_cvt_pk_bf16_f32 {dst}, {src}, {src}")
    k(f"v_and_b32 {dst}, 0xffff0000, {dst}")

def ln_finish(k, s1, s2, rstd, mean, tmp):
    t0, t1 = tmp
    k(f"v_mul_f32 {mean}, 0x3b000000, {s1}")
    k(f"v_mul_f32 {t0}, 0x3b000000, {s2}")
    k(f"v_fma_f32 {t0}, -{mean}, {mean}, {t0}")
    k(f"v_max_f32 {t0}, 0, {t0}")
    round_bf16(k, t0, t0)
    k(f"v_add_f32 {t0}, 0x3727c5ac, {t0}")
    round_bf16(k, t0, t0)
    k(f"v_sqrt_f32 {t0}, {t0}")
    k("s_nop 0")
    round_bf16(k, t0, t0)
    k(f"v_rcp_f32 {rstd}, {t0}")
    round_bf16(k, mean, mean)

PA_MOD = 0
PA_W1 = 4096
PA_W2 = PA_W1 + 8192
PA_TQ = PA_W2 + 8192
PA_TKV = PA_TQ + 8192
PA_LDS = PA_TKV + 8192
def phase_a(k, END):
    k(f"s_load_dwordx4 s[8:11], s[0:1], {A_Q}")
    if FUSED:
        k("s_waitcnt lgkmcnt(0)")
        k.srd(60, 70, 256)
        k.srd(64, 4, 0x4000, WS_SYNC)
        k.kind[64] = "sync"
    k("s_cmp_ge_u32 s3, 4")
    k("s_cbranch_scc1 PA_AUX")
    if X_NOTILE:
        k("s_waitcnt lgkmcnt(0)"); k("s_barrier"); k(f"s_branch {END}")
    k(f"s_load_dwordx4 s[12:15], s[0:1], {A_V}")
    k("s_and_b32 s16, s2, 7")
    k("s_lshr_b32 s17, s2, 3")
    k("v_and_b32 v1, 31, v0")
    k("v_lshrrev_b32 v2, 5, v0")
    k("s_lshl_b32 s18, s3, 1")
    k("v_add_u32 v2, s18, v2")
    k("s_lshl_b32 s18, s17, 6")
    k("v_lshlrev_b32 v3, 3, v2")
    k("v_add_u32 v3, s18, v3")
    k("s_lshl_b32 s18, s16, 6")
    k("v_lshlrev_b32 v4, 1, v1")
    k("v_add_u32 v4, s18, v4")
    k("v_lshlrev_b32 v5, 10, v3")
    k("v_lshl_add_u32 v5, v4, 1, v5")
    k("v_subrev_u32 v6, 3072, v5")
    k("v_lshlrev_b32 v7, 3, v4")
    k("s_movk_i32 s18, 0x1000")
    k("s_waitcnt lgkmcnt(0)")
    k.srd(24, 10, 0x200000)
    k.srd(28, 12, 0x200000)
    k.srd(20, 8, 0x200000)
    k.srd(32, 14, 4096)
    for i in range(8):
        so = "0" if i < 4 else "s18"
        k(f"buffer_load_dword v{32+i}, v5, s[20:23], {so} offen offset:{(i%4)*1024} {NT}")
    k(f"buffer_load_dwordx4 v[40:43], v7, s[32:35], 0 offen {NT}")
    for i in range(3):
        k(f"buffer_load_dword v{10+i}, v6, s[24:27], 0 offen offset:{i*1024} {NT}")
    for base, srd in [(13, 24), (22, 28)]:
        for i in range(8):
            so = "0" if i < 4 else "s18"
            k(f"buffer_load_dword v{base+i}, v5, s[{srd}:{srd+3}], {so} offen offset:{(i%4)*1024} {NT}")
    if PAIRSYNC:
        assert ORDERA
        k("v_mov_b32 v250, 0")
        k("v_lshlrev_b32 v251, 2, v0")
        k(f"v_add_u32 v251, {LSYNC}, v251")
        k("s_mov_b64 exec, 0xffff")
        k("ds_write_b32 v251, v250")
        k("s_mov_b64 exec, -1")
        k("s_waitcnt lgkmcnt(0)")
    if ORDERA == 1: k("s_barrier")
    k.srd(36, 4, 0x200000, WS_KVT)
    k.srd(40, 4, 0x200000, WS_QT)
    k("v_and_b32 v8, 7, v1")
    k("v_xor_b32 v9, v2, v8")
    k("v_lshlrev_b32 v44, 8, v1")
    k("v_lshl_add_u32 v45, v9, 4, v44")
    k(f"v_add_u32 v45, {PA_TQ}, v45")
    k("v_xor_b32 v9, 7, v9")
    k("v_lshl_add_u32 v44, v9, 4, v44")
    k(f"v_add_u32 v44, {PA_TKV}, v44")
    k("v_lshrrev_b32 v96, 3, v0")
    k("s_lshl_b32 s45, s3, 4")
    k("v_add_u32 v96, s45, v96")
    k("v_and_b32 v97, 7, v0")
    k("v_bfe_u32 v98, v96, 1, 3")
    k("v_xor_b32 v98, v97, v98")
    k("v_lshlrev_b32 v98, 4, v98")
    k("v_lshl_add_u32 v98, v96, 7, v98")
    k("v_xor_b32 v99, 64, v98")
    k("v_add_u32 v99, 1024, v99")
    k("s_lshl_b32 s45, s16, 6")
    k("v_add_u32 v96, s45, v96")
    k("v_lshlrev_b32 v96, 12, v96")
    k("v_lshl_add_u32 v96, v97, 4, v96")
    k("s_lshl_b32 s46, s17, 7")
    k("s_sub_u32 s47, 3968, s46")
    k("s_add_u32 s48, s46, 32768")
    k("s_add_u32 s49, s47, 32768")
    k("s_mov_b32 s19, 0x05040100")
    k("s_mov_b32 s44, 0x07060302")
    k.stamp(0)
    k.dstamp("A", 0)
    k("s_waitcnt vmcnt(20)")
    k.dstamp("A", 1)
    for i in range(4): k(f"v_perm_b32 v{88+i}, v{33+2*i}, v{32+2*i}, s19")
    for i in range(4): k(f"v_perm_b32 v{92+i}, v{33+2*i}, v{32+2*i}, s44")
    k("ds_write_b128 v45, v[88:91]")
    k("ds_write_b128 v45, v[92:95] offset:128")
    k("s_waitcnt vmcnt(0)")
    if ORDERA == 2: k("s_barrier")
    k.dstamp("A", 2)
    k.stamp(1)
    for i in range(4):
        k(f"v_lshlrev_b32 v{46+2*i}, 16, v{40+i}")
        k(f"v_and_b32 v{47+2*i}, 0xffff0000, v{40+i}")
    for e in range(2):
        w = 46 + 4*e
        for i in range(11):
            k(f"v_lshlrev_b32 v{60+i}, 16, v{10+i}" if e == 0 else f"v_and_b32 v{60+i}, 0xffff0000, v{10+i}")
        for r in range(8): k(f"v_mul_f32 v{72+r}, v{63+r}, v{w}")
        for j in range(1,4):
            for r in range(8): k(f"v_fmac_f32 v{72+r}, v{63+r-j}, v{w+j}")
        for r in range(8):
            k(f"v_lshlrev_b32 v{60+r}, 16, v{22+r}" if e == 0 else f"v_and_b32 v{60+r}, 0xffff0000, v{22+r}")
        for r in range(8): k(f"v_mul_f32 v{72+r}, v{72+r}, v{60+r}")
        for i in range(4): k(f"v_cvt_pk_bf16_f32 v{80+4*e+i}, v{72+7-2*i}, v{72+6-2*i}")
        k(f"ds_write_b128 v44, v[{80+4*e}:{83+4*e}] offset:{128*e}")
    k("s_waitcnt lgkmcnt(0)")
    k.stamp(2)
    k.dstamp("A", 3)
    k("s_barrier")
    k.dstamp("A", 4)
    for m in range(2):
        k(f"ds_read_b128 v[{60+4*m}:{63+4*m}], v{98+m} offset:{PA_TQ}")
        k(f"ds_read_b128 v[{68+4*m}:{71+4*m}], v{98+m} offset:{PA_TKV}")
    k("s_waitcnt lgkmcnt(0)")
    k("buffer_store_dwordx4 v[60:63], v96, s[40:43], s46 offen")
    k("buffer_store_dwordx4 v[68:71], v96, s[36:39], s47 offen")
    k("buffer_store_dwordx4 v[64:67], v96, s[40:43], s48 offen")
    k("buffer_store_dwordx4 v[72:75], v96, s[36:39], s49 offen")
    k.dstamp("A", 5)
    if DETAIL == "A": k("s_waitcnt vmcnt(0)")
    k.dstamp("A", 6)
    k("s_barrier")
    k(f"s_branch {END}")

    k("PA_AUX:")
    k(f"s_load_dwordx4 s[12:15], s[0:1], {A_C}")
    k(f"s_load_dwordx4 s[48:51], s[0:1], {A_W1}")
    k(f"s_load_dwordx2 s[52:53], s[0:1], {A_SSMK}")
    k("s_sub_u32 s16, s3, 4")
    k("s_mul_hi_u32 s18, s2, 0x5555556")
    k("s_mul_i32 s17, s18, 48")
    k("s_sub_u32 s19, s2, s17")
    k("v_and_b32 v1, 7, v0")
    k("v_lshrrev_b32 v2, 3, v0")
    k("s_lshl_b32 s17, s18, 2")
    k("s_add_u32 s17, s17, s16")
    k("s_lshl_b32 s17, s17, 3")
    k("v_add_u32 v2, s17, v2")
    k("v_mul_u32_u24 v3, 24576, v2")
    k("v_lshl_add_u32 v3, v1, 4, v3")
    k("s_lshl_b32 s17, s19, 7")
    k("v_add_u32 v3, s17, v3")
    k("v_lshlrev_b32 v4, 3, v2")
    k("v_lshrrev_b32 v5, 5, v0")
    k("s_lshl_b32 s17, s2, 3")
    k("s_lshl_b32 s20, s16, 1")
    k("s_add_u32 s17, s17, s20")
    k("v_add_u32 v5, s17, v5")
    k("v_and_b32 v6, 31, v0")
    k("v_lshlrev_b32 v7, 10, v5")
    k("v_lshl_add_u32 v7, v6, 4, v7")
    k("s_mov_b32 s21, 6144")
    k("s_mov_b32 s22, 12288")
    k("s_mov_b32 s23, 18432")
    k("v_lshlrev_b32 v100, 4, v0")
    k.stamp(8)
    k("s_waitcnt lgkmcnt(0)")
    k.stamp(9)
    k.srd(24, 8, 0x200000)
    k.srd(28, 12, 1024)
    k.srd(32, 14, 512*6144)
    if FUSED:
        u = uid()
        k("s_cmp_lg_u32 s3, 7"); k(f"s_cbranch_scc1 PAY{u}")
        k("s_cmp_lt_u32 s2, 248"); k(f"s_cbranch_scc1 PAY{u}")
        k("s_and_b32 s55, s2, 7")
        k("v_mov_b32 v111, 0")
        k("v_lshlrev_b32 v110, 7, v0")
        k("s_lshl_b32 s54, s55, 8")
        k("s_mov_b64 exec, 3")
        k("buffer_store_dword v111, v110, s[64:67], s54 offen sc1")
        k("buffer_store_dword v111, v110, s[64:67], s54 offen offset:2048 sc1")
        k("s_mov_b64 exec, -1")
        k("v_lshlrev_b32 v110, 10, v0")
        k("s_lshl_b32 s54, s55, 7")
        k("s_add_u32 s54, s54, 0x1000")
        k("s_mov_b64 exec, 15")
        k("buffer_store_dword v111, v110, s[64:67], s54 offen sc1")
        k("s_waitcnt vmcnt(0)")
        k("v_mov_b32 v111, 1")
        k("s_lshl_b32 s54, s55, 2")
        k("s_mov_b64 exec, 1")
        k("buffer_store_dword v111, off, s[60:63], s54 sc1")
        k("s_mov_b64 exec, -1")
        k(f"PAY{u}:")
    if ORDERA: k("s_barrier")
    k(f"buffer_load_dwordx4 v[8:11], v7, s[24:27], 0 offen {NT}")
    k(f"buffer_load_dwordx4 v[12:15], v7, s[24:27], 0 offen offset:512 {NT}")
    k("s_cmp_ge_u32 s18, 4")
    k("s_cbranch_scc1 PA_NOMODLD")
    k(f"buffer_load_dwordx2 v[16:17], v4, s[28:31], 0 offen {NT}")
    for i in range(4):
        so = "0" if i == 0 else f"s{20+i}"
        if not X_NOMOD: k(f"buffer_load_dwordx4 v[{20+4*i}:{23+4*i}], v3, s[32:35], {so} offen {NT}")
    k("PA_NOMODLD:")
    k.stamp(10)
    if X_NOROLE: k("s_branch PA_LDONE")
    k("s_cmp_eq_u32 s3, 7")
    k("s_cbranch_scc1 PA_L7")
    k("s_cmp_ge_u32 s2, 224")
    k("s_cbranch_scc1 PA_LDONE")
    k("s_cmp_eq_u32 s3, 4")
    k("s_cbranch_scc0 PA_LDONE" if W2_IN_B else "s_cbranch_scc0 PA_L56")
    k("s_and_b32 s7, s2, 7")
    k("s_lshr_b32 s6, s2, 3")
    k("v_lshrrev_b32 v101, 3, v0")
    k("v_and_b32 v102, 7, v0")
    k("v_bfe_u32 v103, v0, 4, 1")
    k("v_lshlrev_b32 v103, 2, v103")
    k("v_xor_b32 v102, v102, v103")
    k("v_mul_u32_u24 v101, 3584, v101")
    k("v_lshl_add_u32 v101, v102, 4, v101")
    k("s_lshl_b32 s17, s6, 7")
    k("v_add_u32 v101, s17, v101")
    k(f"s_mul_i32 s54, s7, {64*3584}")
    k(f"s_mov_b32 s55, {PA_W1}")
    k.srd(56, 48, 512*3584)
    for i in range(8):
        k("s_mov_b32 m0, s55")
        k("s_add_u32 s55, s55, 1024")
        k(f"buffer_load_dwordx4 v101, s[56:59], s54 offen {NT} lds")
        k(f"s_add_u32 s54, s54, {8*3584}")
    k("s_branch PA_LDONE")
    k("PA_L56:")
    k("s_lshl_b32 s6, s2, 1")
    k("s_add_u32 s6, s6, s3")
    k("s_sub_u32 s6, s6, 5")
    k("s_and_b32 s7, s6, 3")
    k("s_lshr_b32 s6, s6, 2")
    k("v_lshrrev_b32 v101, 4, v0")
    k("v_and_b32 v102, 15, v0")
    k("v_lshlrev_b32 v103, 2, v101")
    k("v_xor_b32 v102, v102, v103")
    k("v_lshlrev_b32 v102, 4, v102")
    k("v_lshl_add_u32 v101, v101, 10, v102")
    k("s_lshl_b32 s17, s7, 8")
    k("v_add_u32 v101, s17, v101")
    k("s_lshl_b32 s54, s6, 14")
    k("s_sub_u32 s55, s3, 5")
    k("s_lshl_b32 s55, s55, 12")
    k(f"s_add_u32 s55, s55, {PA_W2}")
    k.srd(56, 50, 1792*1024)
    for i in range(4):
        k("s_mov_b32 m0, s55")
        k("s_add_u32 s55, s55, 1024")
        k(f"buffer_load_dwordx4 v101, s[56:59], s54 offen {NT} lds")
        k("s_add_u32 s54, s54, 4096")
    k("s_branch PA_LDONE")
    k("PA_L7:")
    if FUSED: k("s_branch PA_LDONE")
    k("s_and_b32 s6, s2, 7")
    k("s_lshl_b32 s6, s6, 6")
    k("s_lshr_b32 s7, s2, 3")
    k("s_lshl_b32 s7, s7, 1")
    k("s_add_u32 s6, s6, s7")
    k("s_lshl_b32 s54, s6, 12")
    k.srd(56, 52, 0x200000)
    for i in range(8):
        k(f"buffer_load_dwordx4 v[{104+4*(i%4)}:{107+4*(i%4)}], v100, s[56:59], s54 offen offset:{(i%4)*1024} {NT}")
        if i == 3: k("s_add_u32 s54, s54, 4096")
    k("PA_LDONE:")
    k.dstamp("A", 1)
    k.stamp(3)
    k("s_barrier")
    k.srd(36, 4, 0x4000, WS_ST1)
    k.srd(40, 4, 4*12288, WS_MODP)
    k("s_mov_b32 s44, 0x3f803f80")
    for i in range(4): k(f"v_mov_b32 v{40+i}, 0")
    k("s_waitcnt vmcnt(0)")
    k.dstamp("A", 2)
    k("s_cmp_ge_u32 s18, 4")
    k("s_cbranch_scc1 PA_NOMOD0")
    k("v_lshlrev_b32 v50, 16, v16"); k("v_and_b32 v51, 0xffff0000, v16")
    k("v_lshlrev_b32 v52, 16, v17"); k("v_and_b32 v53, 0xffff0000, v17")
    k("s_mov_b32 s45, 0xbfb8aa3b")
    for i in range(4): k(f"v_mul_f32 v{60+i}, s45, v{50+i}")
    for i in range(4): k(f"v_exp_f32 v{60+i}, v{60+i}")
    k("s_nop 0")
    for i in range(4): k(f"v_add_f32 v{60+i}, 1.0, v{60+i}")
    for i in range(4): k(f"v_rcp_f32 v{60+i}, v{60+i}")
    k("s_nop 0")
    for i in range(4): k(f"v_mul_f32 v{60+i}, v{50+i}, v{60+i}")
    for i in range(4): k(f"v_cvt_pk_bf16_f32 v{70+i}, v{60+i}, v{60+i}")
    for i in range(4): k(f"v_and_b32 v{60+i}, 0xffff0000, v{70+i}")
    for i in range(4): k(f"v_and_b32 v{70+i}, 0xffff, v{70+i}")
    for c in range(8): k(f"v_mov_b32 v{80+c}, 0")
    for i in range(4):
        for j in range(4):
            k(f"v_dot2_f32_bf16 v{80+2*j}, v{20+4*i+j}, v{70+i}, v{80+2*j}")
            k(f"v_dot2_f32_bf16 v{81+2*j}, v{20+4*i+j}, v{60+i}, v{81+2*j}")
    k("s_nop 2")
    for c in range(8):
        k(f"v_add_f32_dpp v{80+c}, v{80+c}, v{80+c} row_ror:8 row_mask:0xf bank_mask:0xf")
    k("v_lshrrev_b32 v90, 4, v0")
    k("s_lshl_b32 s17, s16, 2")
    k("v_add_u32 v90, s17, v90")
    k("v_lshlrev_b32 v90, 8, v90")
    k("v_lshl_add_u32 v90, v1, 5, v90")
    k(f"v_add_u32 v90, {PA_MOD}, v90")
    k("v_and_b32 v91, 15, v0")
    k("v_cmp_gt_u32 vcc, 8, v91")
    k("s_and_saveexec_b64 s[46:47], vcc")
    k("ds_write_b128 v90, v[80:83]")
    k("ds_write_b128 v90, v[84:87] offset:16")
    k("s_mov_b64 exec, s[46:47]")
    k("PA_NOMOD0:")
    k.stamp(4)
    for j in range(8):
        k(f"v_dot2_f32_bf16 v{40+(j&1)}, v{8+j}, s44, v{40+(j&1)}")
        k(f"v_dot2_f32_bf16 v{42+(j&1)}, v{8+j}, v{8+j}, v{42+(j&1)}")
    k("s_nop 2")
    k("v_add_f32 v40, v40, v41")
    k("v_add_f32 v42, v42, v43")
    for dpp in ["quad_perm:[1,0,3,2] row_mask:0xf", "quad_perm:[2,3,0,1] row_mask:0xf", "row_half_mirror row_mask:0xf", "row_mirror row_mask:0xf", "row_bcast:15 row_mask:0xa"]:
        k("s_nop 1")
        k(f"v_add_f32_dpp v40, v40, v40 {dpp} bank_mask:0xf")
        k(f"v_add_f32_dpp v42, v42, v42 {dpp} bank_mask:0xf")
    ln_finish(k, "v40", "v42", "v44", "v45", ["v46", "v47"])
    k("v_mul_f32 v45, v45, v44")
    k("v_sub_f32 v45, 0, v45")
    k("v_lshlrev_b32 v46, 2, v5")
    k("v_cmp_eq_u32 vcc, 16, v6")
    k("s_movk_i32 s45, 0x2000")
    k("s_and_saveexec_b64 s[46:47], vcc")
    k("buffer_store_dword v44, v46, s[36:39], 0 offen")
    k("buffer_store_dword v45, v46, s[36:39], s45 offen")
    if GRAN:
        k.srd(56, 4, 2048*8, WS_ST2)
        k("v_lshlrev_b32 v46, 3, v5")
        k("v_mov_b32 v48, 0"); k("v_mov_b32 v49, 0")
        k("buffer_store_dwordx2 v[48:49], v46, s[56:59], 0 offen")
    k("s_mov_b64 exec, s[46:47]")
    k.stamp(5)
    k("s_cmp_eq_u32 s3, 7")
    k("s_cbranch_scc1 PA_WDONE")
    k("s_cmp_ge_u32 s2, 224")
    k("s_cbranch_scc1 PA_WDONE")
    k("s_cmp_eq_u32 s3, 4")
    k("s_cbranch_scc0 PA_WDONE" if W2_IN_B else "s_cbranch_scc0 PA_S56")
    k.srd(56, 4, 56*32*1024, WS_W1F)
    k("v_bfe_u32 v101, v0, 2, 2")
    k("v_lshrrev_b32 v102, 5, v0")
    k("v_lshl_add_u32 v102, v102, 3, v101")
    k("v_lshlrev_b32 v102, 7, v102")
    k("v_bfe_u32 v103, v0, 4, 1")
    k("v_lshl_add_u32 v102, v103, 5, v102")
    k("v_and_b32 v103, 3, v0")
    k("v_lshl_add_u32 v102, v103, 3, v102")
    k("v_lshrrev_b32 v101, 1, v101")
    k("v_lshl_add_u32 v101, v101, 6, v102")
    k(f"v_add_u32 v101, {PA_W1}, v101")
    k("v_xor_b32 v102, 64, v101")
    for a in range(2):
        for st in range(4):
            r = 104 + 16*a + 4*st
            k(f"ds_read_b64_tr_b16 v[{r}:{r+1}], v{101+a} offset:{st*2048}")
            k(f"ds_read_b64_tr_b16 v[{r+2}:{r+3}], v{101+a} offset:{st*2048+512}")
        k("s_waitcnt lgkmcnt(0)")
    k("s_lshl_b32 s54, s6, 16")
    k("s_lshl_b32 s55, s7, 12")
    k("s_add_u32 s54, s54, s55")
    k("s_add_u32 s55, s54, 32768")
    for a in range(2):
        for st in range(4):
            r = 104 + 16*a + 4*st
            k(f"buffer_store_dwordx4 v[{r}:{r+3}], v100, s[56:59], s{54+a} offen offset:{st*1024}")
    k("s_branch PA_WDONE")
    k("PA_S56:")
    k.srd(56, 4, 16*112*1024, WS_W2F)
    k("v_bfe_u32 v101, v0, 2, 2")
    k("v_lshrrev_b32 v102, 5, v0")
    k("v_lshl_add_u32 v102, v102, 2, v101")
    k("v_lshlrev_b32 v102, 8, v102")
    k("v_bfe_u32 v103, v0, 4, 1")
    k("v_lshl_add_u32 v102, v103, 5, v102")
    k("v_and_b32 v103, 3, v0")
    k("v_lshl_add_u32 v102, v103, 3, v102")
    k("s_sub_u32 s55, s3, 5")
    k("s_lshl_b32 s55, s55, 12")
    k(f"s_add_u32 s55, s55, {PA_W2}")
    k("v_add_u32 v102, s55, v102")
    for a in range(4):
        k(f"v_xor_b32 v103, {a}, v101")
        k(f"v_lshl_add_u32 v103, v103, 6, v102")
        k(f"ds_read_b64_tr_b16 v[{104+4*a}:{104+4*a+1}], v103")
        k(f"ds_read_b64_tr_b16 v[{104+4*a+2}:{104+4*a+3}], v103 offset:2048")
    k(f"s_mul_i32 s54, s7, {4*112*1024}")
    k("s_lshl_b32 s55, s6, 10")
    k("s_add_u32 s54, s54, s55")
    k("s_waitcnt lgkmcnt(0)")
    for a in range(4):
        k(f"buffer_store_dwordx4 v[{104+4*a}:{104+4*a+3}], v100, s[56:59], s54 offen")
        k(f"s_add_u32 s54, s54, {112*1024}")
    k("PA_WDONE:")
    if FUSED:
        k("v_lshlrev_b32 v112, 2, v0")
        k("s_mov_b64 exec, 0xff")
        k("buffer_load_dword v111, v112, s[60:63], 0 offen sc1")
        k("s_mov_b64 exec, -1")
    k.stamp(6)
    k("PA_NOMOD:")
    k.dstamp("A", 5)
    k.stamp(7)
    k("s_waitcnt lgkmcnt(0)")
    k("s_barrier")
    k("s_cmp_ge_u32 s18, 4")
    k(f"s_cbranch_scc1 {END}")
    k("s_cmp_lg_u32 s3, 5")
    k(f"s_cbranch_scc1 {END}")
    k("v_lshlrev_b32 v5, 2, v0")
    for i in range(16):
        k(f"ds_read_b32 v{8+i}, v5 offset:{PA_MOD + i*256}")
        if i == 14: k("s_waitcnt lgkmcnt(0)")
    k("s_waitcnt lgkmcnt(0)")
    for st in [8, 4, 2, 1]:
        for i in range(st): k(f"v_add_f32 v{8+i}, v{8+i}, v{8+i+st}")
    k("s_mul_i32 s17, s18, 12288")
    k("s_lshl_b32 s20, s19, 8")
    k("s_add_u32 s17, s17, s20")
    k("buffer_store_dword v8, v5, s[40:43], s17 offen")

XR_BYTES = 4608
KC_STRIDE = 4160
CH_BYTES = XR_BYTES + 4*KC_STRIDE
RED_OFF = 2*CH_BYTES
PREP_OFF = RED_OFF + 16384
PB_W2 = PREP_OFF + 1024
PB_LDS = PB_W2 + 8192
def phase_b(k, END):
    k("s_cmp_ge_u32 s3, 4")
    k("s_cbranch_scc1 PB_PREP")
    if FUSED and TILE_RELOAD:
        k("buffer_load_dwordx4 v[60:63], v96, s[40:43], s46 offen")
        k("buffer_load_dwordx4 v[64:67], v96, s[36:39], s47 offen")
        k("buffer_load_dwordx4 v[68:71], v96, s[40:43], s48 offen")
        k("buffer_load_dwordx4 v[72:75], v96, s[36:39], s49 offen")
    k(f"s_load_dwordx4 s[8:11], s[0:1], {A_SSMK}")
    k("s_lshr_b32 s6, s3, 1")
    k("s_and_b32 s12, s3, 1")
    k("s_and_b32 s13, s2, 7")
    k("s_lshl_b32 s13, s13, 6")
    k("s_lshr_b32 s14, s2, 3")
    k("s_lshl_b32 s14, s14, 1")
    k("s_add_u32 s13, s13, s14")
    k("s_add_u32 s13, s13, s6")
    k("s_lshl_b32 s14, s13, 12")
    k(f"s_mul_i32 s15, s6, {CH_BYTES}")
    k("v_lshlrev_b32 v2, 4, v0")
    k("s_waitcnt lgkmcnt(0)")
    k.srd(28, 8, 0x200000)
    k(f"buffer_load_dwordx2 v[18:19], off, s[28:31], s14 {NT}")
    for ee in range(2):
        k(f"s_lshl_b32 s48, s12, 2")
        k(f"s_add_u32 s49, s14, s48")
        k(f"s_add_u32 s49, s49, {2+2*ee}")
        k(f"s_mul_i32 s50, s12, {2*KC_STRIDE}")
        k(f"s_add_u32 s50, s50, s15")
        k(f"s_add_u32 s50, s50, {XR_BYTES + ee*KC_STRIDE + 32}")
        k("s_mov_b32 m0, s50")
        k("s_nop 0")
        for c in range(4):
            k(f"buffer_load_dwordx4 v2, s[28:31], s49 offen offset:{c*1024} {NT} lds")
    k.srd(36, 4, 0x200000, WS_QT)
    k.srd(40, 4, 0x4000, WS_ST1)
    k.srd(44, 4, 0x200000, WS_X1T)
    k.srd(52, 10, 1024)
    k.srd(56, 4, 4*12288, WS_MODP)
    k("v_and_b32 v3, 15, v0")
    k("v_lshrrev_b32 v4, 4, v0")
    k("v_lshlrev_b32 v5, 4, v3")
    k("v_lshl_add_u32 v5, v4, 2, v5")
    k("s_lshl_b32 s48, s12, 10")
    k("v_add_u32 v5, s48, v5")
    k("v_lshlrev_b32 v6, 1, v5")
    k("v_lshlrev_b32 v7, 2, v5")
    QV, SV = 200, 208
    k("s_lshl_b32 s20, s13, 1")
    k(f"buffer_load_ushort v240, off, s[52:55], s20 {NT}")
    k("v_and_b32 v241, 3, v0")
    k("v_cmp_eq_u32 vcc, 3, v241")
    k("s_nop 1")
    k("v_addc_co_u32 v241, vcc, 0, v241, vcc")
    k("v_lshlrev_b32 v241, 11, v241")
    k("v_bfe_u32 v242, v0, 2, 2")
    k("v_mul_u32_u24 v242, 12288, v242")
    k("v_add_u32 v241, v241, v242")
    k.srd(8, 4, 0x200000, WS_X1S)
    for i in range(8, 12): k(f"v_mov_b32 v{i}, 0")
    k("v_lshlrev_b32 v12, 3, v0")
    k("s_add_u32 s48, s15, 4096")
    k("v_add_u32 v12, s48, v12")
    k("ds_write_b64 v12, v[8:9]")
    k("v_bfe_u32 v14, v0, 2, 2")
    k(f"v_mul_u32_u24 v14, {KC_STRIDE}, v14")
    k("v_and_b32 v15, 3, v0")
    k("v_lshl_add_u32 v14, v15, 3, v14")
    k("v_lshl_add_u32 v14, v4, 4, v14")
    k("s_lshl_b32 s48, s12, 8")
    k("s_add_u32 s48, s48, s15")
    k(f"s_add_u32 s49, s48, {XR_BYTES}")
    k("v_add_u32 v14, s49, v14")
    k("v_lshlrev_b32 v15, 4, v4")
    k("v_lshlrev_b32 v16, 5, v3")
    k("v_sub_u32 v15, v15, v16")
    k("s_add_u32 s49, s48, 480")
    k("v_add_u32 v15, s49, v15")
    ACC = 20; FA = [64, 128]; FB = [96, 160]
    for i in range(32): k(f"v_mov_b32 v{ACC+i}, 0")
    k("v_lshrrev_b32 v12, 1, v0")
    k(f"v_mul_u32_u24 v12, {KC_STRIDE}, v12")
    k("v_and_b32 v13, 1, v0")
    k("v_lshl_add_u32 v12, v13, 4, v12")
    k(f"s_mul_i32 s50, s12, {2*KC_STRIDE}")
    k("s_add_u32 s50, s50, s15")
    k(f"s_add_u32 s50, s50, {XR_BYTES}")
    k("v_add_u32 v12, s50, v12")
    k("s_waitcnt vmcnt(9)")
    k("v_lshlrev_b32 v52, 16, v18")
    k("v_alignbit_b32 v53, v19, v18, 16")
    k("v_cmp_eq_u32 vcc, 1, v0")
    k("s_cmp_eq_u32 s12, 0")
    k("s_cbranch_scc0 PB_FX1")
    k("v_cndmask_b32 v11, v18, v52, vcc")
    k("s_branch PB_FX2")
    k("PB_FX1:")
    k("v_cndmask_b32 v10, v18, v52, vcc")
    k("v_cndmask_b32 v11, v19, v53, vcc")
    k("PB_FX2:")
    k("v_cmp_eq_u32 vcc, 1, v13")
    k("s_nop 1")
    k("v_cndmask_b32 v10, 0, v10, vcc")
    k("v_cndmask_b32 v11, 0, v11, vcc")
    k("s_mov_b64 exec, 0xf")
    k("ds_write_b128 v12, v[8:11]")
    k("s_mov_b64 exec, -1")
    k.stamp(0)
    sync(k, 1, may_be_7=False)
    k.fstamp(1)
    k.srd(32, 4, 0x200000, WS_KVT)
    k("s_lshl_b32 s48, s12, 11")
    k("s_add_u32 s49, s14, s48")
    k("s_add_u32 s50, s15, s48")
    k("s_mov_b32 m0, s50")
    k("s_nop 0")
    k("buffer_load_dwordx4 v2, s[32:35], s49 offen lds")
    k("buffer_load_dwordx4 v2, s[32:35], s49 offen offset:1024 lds")
    for i in range(4):
        k(f"buffer_load_dwordx2 v[{QV+2*i}:{QV+2*i+1}], v6, s[36:39], s14 offen offset:{i*512}")
    k("s_movk_i32 s51, 0x2000")
    for i in range(4):
        k(f"buffer_load_dwordx4 v[{SV+8*i}:{SV+8*i+3}], v7, s[40:43], 0 offen offset:{i*1024}")
        k(f"buffer_load_dwordx4 v[{SV+8*i+4}:{SV+8*i+7}], v7, s[40:43], s51 offen offset:{i*1024}")
    k("s_lshl_b32 s20, s13, 2")
    k("buffer_load_dword v241, v241, s[56:59], s20 offen")
    k("s_waitcnt vmcnt(13) lgkmcnt(0)")
    k("s_barrier")
    k.stamp(1)
    k.fstamp(2)
    if CONVPRIO: k(f"s_setprio {CONVPRIO}")
    def loads(ph, st):
        out = []
        for tt in range(8):
            c = tt
            out.append(f"ds_read_b128 v[{FB[st]+4*c}:{FB[st]+4*c+3}], v15 offset:{3584-512*c+64*ph}")
            out.append(f"ds_read_b64_tr_b16 v[{FA[st]+4*tt}:{FA[st]+4*tt+1}], v14 offset:{64*ph+512*tt}")
            out.append(f"ds_read_b64_tr_b16 v[{FA[st]+4*tt+2}:{FA[st]+4*tt+3}], v14 offset:{64*ph+512*tt+8}")
        return out
    def mfmas(st):
        pairs = [(tt, c) for tt in range(8) for c in range(8-tt)]
        pairs.sort(key=lambda p: (max(p), p[0]))
        return [f"v_mfma_f32_16x16x32_bf16 v[{ACC+4*(tt+c)}:{ACC+4*(tt+c)+3}], v[{FA[st]+4*tt}:{FA[st]+4*tt+3}], v[{FB[st]+4*c}:{FB[st]+4*c+3}], v[{ACC+4*(tt+c)}:{ACC+4*(tt+c)+3}]" for tt, c in pairs], pairs
    QF, GG, KVR, KVF = 64, 80, 96, 104
    def fillers():
        f = []
        for i in range(4):
            f += [f"v_lshlrev_b32 v{QF+4*i}, 16, v{QV+2*i}", f"v_and_b32 v{QF+4*i+1}, 0xffff0000, v{QV+2*i}",
                  f"v_lshlrev_b32 v{QF+4*i+2}, 16, v{QV+2*i+1}", f"v_and_b32 v{QF+4*i+3}, 0xffff0000, v{QV+2*i+1}"]
        for i in range(4):
            for p in range(2):
                if NOPK & 1:
                    f.append("\n".join(f"v_fma_f32 v{GG+4*i+2*p+e}, v{QF+4*i+2*p+e}, v{SV+8*i+2*p+e}, v{SV+8*i+4+2*p+e}" for e in range(2)))
                else:
                    f.append(f"v_pk_fma_f32 v[{GG+4*i+2*p}:{GG+4*i+2*p+1}], v[{QF+4*i+2*p}:{QF+4*i+2*p+1}], v[{SV+8*i+2*p}:{SV+8*i+2*p+1}], v[{SV+8*i+4+2*p}:{SV+8*i+4+2*p+1}]")
        for i in range(4):
            f += [f"v_and_b32 v{KVF+4*i}, 0xffff0000, v{KVR+2*i+1}", f"v_lshlrev_b32 v{KVF+4*i+1}, 16, v{KVR+2*i+1}",
                  f"v_and_b32 v{KVF+4*i+2}, 0xffff0000, v{KVR+2*i}", f"v_lshlrev_b32 v{KVF+4*i+3}, 16, v{KVR+2*i}"]
        for i in range(4):
            for p in range(2):
                if NOPK & 2:
                    f.append("\n".join(f"v_fma_f32 v{GG+4*i+2*p+e}, v{GG+4*i+2*p+e}, v242, v243" for e in range(2)))
                else:
                    f.append(f"v_pk_fma_f32 v[{GG+4*i+2*p}:{GG+4*i+2*p+1}], v[{GG+4*i+2*p}:{GG+4*i+2*p+1}], v[242:243], v[242:243] op_sel:[0,0,1] op_sel_hi:[1,0,1]")
        return f
    for x in loads(0, 0): k(x)
    for ph in range(4):
        st = ph % 2
        ms, pairs = mfmas(st)
        ls = loads(ph+1, 1-st) if ph < 3 else []
        if ph > 0: k("s_waitcnt lgkmcnt(0)")
        if ph == 2:
            k("s_waitcnt vmcnt(0)")
            k("v_lshlrev_b32 v240, 16, v240")
            k("v_add_f32_dpp v241, v241, v241 row_ror:4 row_mask:0xf bank_mask:0xf")
            k("s_nop 1")
            k("v_add_f32_dpp v241, v241, v241 row_ror:8 row_mask:0xf bank_mask:0xf")
            round_bf16(k, "v241", "v241")
            k("v_add_f32 v242, 1.0, v241")
            round_bf16(k, "v242", "v242")
            k("s_nop 0")
            k("v_readlane_b32 s52, v241, 0")
            k("v_readlane_b32 s53, v242, 1")
            k("v_readlane_b32 s54, v241, 2")
            k("v_readlane_b32 s55, v242, 3")
            k("s_nop 1")
            k("v_mov_b32 v242, s53")
            k("v_mov_b32 v243, s52")
            k("v_mul_f32 v242, s54, v242")
            k("v_mul_f32 v243, s54, v243")
            k("v_mov_b32 v244, s55")
        if ph == 3:
            k("v_lshlrev_b32 v18, 1, v5")
            k("s_add_u32 s48, s15, 4088")
            k("v_sub_u32 v18, s48, v18")
            k("v_subrev_u32 v18, 1536, v18")
            for i in range(4):
                k(f"ds_read_b64 v[{KVR+2*i}:{KVR+2*i+1}], v18 offset:{(3-i)*512}")
        fl = fillers() if ph == 3 else []
        li = 0; done = -1; fi = 0
        for i, m in enumerate(ms):
            if ph == 0:
                need = max(pairs[i])
                if need > done:
                    out = 24 + li - 3*(need+1)
                    k(f"s_waitcnt lgkmcnt({min(out,15)})")
                    done = need
            k(m)
            if li < len(ls) and (ph > 0 or i >= 8) and i < 34:
                k(ls[li]); li += 1
            if fl and FILLI:
                n = 2 if i % 3 == 0 else 1
                if FILLI == 2: n = 0 if i < 4 else n
                for _ in range(n):
                    if fi < len(fl):
                        if fi == 24: k("s_waitcnt lgkmcnt(0)")
                        k(fl[fi]); fi += 1
        while li < len(ls):
            k(ls[li]); li += 1
        while fi < len(fl):
            if fi == 24: k("s_waitcnt lgkmcnt(0)")
            k(fl[fi]); fi += 1
    k.stamp(2)
    k.fstamp(3)
    k("s_lshl_b32 s48, s3, 12")
    k(f"s_add_u32 s48, s48, {RED_OFF}")
    k("v_add_u32 v16, s48, v2")
    k("s_xor_b32 s49, s3, 1")
    k("s_lshl_b32 s49, s49, 12")
    k(f"s_add_u32 s49, s49, {RED_OFF}")
    k("v_add_u32 v17, s49, v2")
    k("v_bfe_u32 v6, v0, 4, 1")
    k("v_lshlrev_b32 v6, 9, v6")
    k("v_lshl_add_u32 v6, v3, 5, v6")
    k("v_lshrrev_b32 v7, 5, v0")
    k("v_lshl_add_u32 v6, v7, 4, v6")
    k("s_lshl_b32 s48, s12, 11")
    k("s_add_u32 s48, s48, s14")
    k("s_add_u32 s49, s48, 1024")
    k("s_cmp_eq_u32 s12, 0")
    k("s_cbranch_scc0 PB_H1")
    for i in range(4):
        k(f"ds_write_b128 v16, v[{ACC+16+4*i}:{ACC+16+4*i+3}] offset:{i*1024}")
    k("s_branch PB_HX")
    k("PB_H1:")
    for i in range(4):
        k(f"ds_write_b128 v16, v[{ACC+4*i}:{ACC+4*i+3}] offset:{i*1024}")
    k("s_waitcnt lgkmcnt(0)")
    for i in range(16): k(f"v_mov_b32 v{ACC+i}, v{ACC+16+i}")
    k("PB_HX:")
    for i in range(4):
        for p in range(2):
            a = ACC + 4*i + 2*p
            k(f"v_pk_fma_f32 v[{a}:{a+1}], v[{KVF+4*i+2*p}:{KVF+4*i+2*p+1}], v[240:241], v[{a}:{a+1}] op_sel_hi:[1,0,1]")
    k("s_waitcnt lgkmcnt(0)")
    if PAIRSYNC: lds_sync(k, 0, 2, "s6")
    else: k("s_barrier")
    PR = 128
    for i in range(4):
        k(f"ds_read_b128 v[{PR+4*i}:{PR+4*i+3}], v17 offset:{i*1024}")
    k.stamp(3)
    for i in range(4):
        k(f"s_waitcnt lgkmcnt({3-i})")
        a = ACC + 4*i
        o = 160 + 4*(i//2) + 2*(i%2)
        for p in range(2):
            k(f"v_pk_add_f32 v[{a+2*p}:{a+2*p+1}], v[{a+2*p}:{a+2*p+1}], v[{PR+4*i+2*p}:{PR+4*i+2*p+1}]")
        for p in range(2):
            k(f"v_pk_fma_f32 v[{a+2*p}:{a+2*p+1}], v[{GG+4*i+2*p}:{GG+4*i+2*p+1}], v[{a+2*p}:{a+2*p+1}], v[{QF+4*i+2*p}:{QF+4*i+2*p+1}]")
        k(f"v_cvt_pk_bf16_f32 v{o}, v{a}, v{a+1}")
        k(f"v_cvt_pk_bf16_f32 v{o+1}, v{a+2}, v{a+3}")
        t = KVF + 4*i
        k(f"v_lshlrev_b32 v{t}, 16, v{o}")
        k(f"v_and_b32 v{t+1}, 0xffff0000, v{o}")
        k(f"v_lshlrev_b32 v{t+2}, 16, v{o+1}")
        k(f"v_and_b32 v{t+3}, 0xffff0000, v{o+1}")
        for p in range(2):
            k(f"v_pk_mul_f32 v[{t+2*p}:{t+2*p+1}], v[{t+2*p}:{t+2*p+1}], v[244:245] op_sel_hi:[1,0]")
        k(f"v_cvt_pk_bf16_f32 v{o+8}, v{t}, v{t+1}")
        k(f"v_cvt_pk_bf16_f32 v{o+9}, v{t+2}, v{t+3}")
        if i % 2 == 1:
            b = 160 + 4*(i//2)
            for bb, srd in ((b, "s[44:47]"), (b+8, "s[8:11]")):
                k("s_nop 1")
                k(f"v_permlane16_swap_b32 v{bb}, v{bb+2}")
                k(f"v_permlane16_swap_b32 v{bb+1}, v{bb+3}")
                k(f"buffer_store_dwordx4 v[{bb}:{bb+3}], v6, {srd}, s{48 + i//2} offen")
    k.stamp(4)
    if CONVPRIO: k("s_setprio 0")
    k(f"s_branch {END}")

    k("PB_PREP:")
    k("v_lshlrev_b32 v10, 4, v0")
    k("s_waitcnt lgkmcnt(0)")
    k.srd(20, 4, 56*32*1024, WS_W1F)
    k("s_cmp_eq_u32 s3, 4")
    k("s_cbranch_scc0 PB_PF")
    sync(k, 1, may_be_7=False)
    k("s_cmp_ge_u32 s2, 224")
    k("s_cbranch_scc1 PB_IDLE")
    k("s_lshr_b32 s6, s2, 2")
    k("s_and_b32 s7, s2, 3")
    k("v_lshrrev_b32 v4, 5, v0")
    k("v_lshlrev_b32 v9, 5, v4")
    k.srd(16, 4, 4*12288, WS_MODP)
    k.srd(24, 4, 0x10000, WS_UT)
    k("s_lshl_b32 s32, s6, 15")
    k("s_lshl_b32 s33, s7, 13")
    k("s_add_u32 s32, s32, s33")
    k("s_add_u32 s33, s32, 4096")
    for st in range(8):
        so = "s32" if st < 4 else "s33"
        k(f"buffer_load_dwordx4 v[{16+4*st}:{16+4*st+3}], v10, s[20:23], {so} offen offset:{(st%4)*1024}")
    k("v_lshlrev_b32 v8, 3, v0")
    k("s_lshl_b32 s29, s7, 9")
    k(f"s_add_u32 s30, s29, {2048*4}")
    k(f"s_add_u32 s31, s29, {1536*4}")
    for p in range(4):
        k(f"buffer_load_dwordx2 v[{64+2*p}:{65+2*p}], v8, s[16:19], s30 offen")
        k(f"buffer_load_dwordx2 v[{72+2*p}:{73+2*p}], v8, s[16:19], s31 offen")
        k("s_add_u32 s30, s30, 12288"); k("s_add_u32 s31, s31, 12288")
    for i in range(4): k(f"v_mov_b32 v{12+i}, 0")
    k("s_barrier")
    k("s_waitcnt vmcnt(0)")
    for b in (64, 72):
        for e in range(2):
            k(f"v_add_f32 v{b+e}, v{b+e}, v{b+2+e}"); k(f"v_add_f32 v{b+4+e}, v{b+4+e}, v{b+6+e}"); k(f"v_add_f32 v{b+e}, v{b+e}, v{b+4+e}")
            round_bf16(k, f"v{b+e}", f"v{b+e}")
    for e in range(2):
        k(f"v_add_f32 v{64+e}, 1.0, v{64+e}")
        round_bf16(k, f"v{64+e}", f"v{64+e}")
    k(f"v_add_u32 v8, {PREP_OFF}, v8")
    k("ds_write_b64 v8, v[64:65]")
    k("ds_write_b64 v8, v[72:73] offset:512")
    k(f"v_add_u32 v9, {PREP_OFF}, v9")
    k("s_waitcnt lgkmcnt(0)")
    for st in range(8):
        pb = 64 + 16*st
        k(f"ds_read_b128 v[{pb}:{pb+3}], v9 offset:{st*64}")
        k(f"ds_read_b128 v[{pb+4}:{pb+7}], v9 offset:{st*64+16}")
        k(f"ds_read_b128 v[{pb+8}:{pb+11}], v9 offset:{512+st*64}")
        k(f"ds_read_b128 v[{pb+12}:{pb+15}], v9 offset:{512+st*64+16}")
        if st % 3 == 2: k("s_waitcnt lgkmcnt(0)")
    k("s_waitcnt lgkmcnt(0)")
    for st in range(8):
        pb = 64 + 16*st
        for i in range(4):
            k(f"v_lshlrev_b32 v{48+2*i}, 16, v{16+4*st+i}")
            k(f"v_and_b32 v{49+2*i}, 0xffff0000, v{16+4*st+i}")
        for jx in range(8):
            k(f"v_fmac_f32 v{12+(jx&1)}, v{48+jx}, v{pb+jx}")
            k(f"v_fmac_f32 v{14+(jx&1)}, v{48+jx}, v{pb+8+jx}")
    k("v_add_f32 v12, v12, v13")
    k("v_add_f32 v13, v14, v15")
    k("v_mov_b32 v14, v12"); k("v_mov_b32 v15, v13")
    k("s_nop 1")
    k("v_permlane32_swap_b32 v12, v14")
    k("v_permlane32_swap_b32 v13, v15")
    k("s_nop 1")
    k("v_add_f32 v12, v12, v14")
    k("v_add_f32 v13, v13, v15")
    k("s_lshl_b32 s11, s7, 14")
    k("s_lshl_b32 s33, s6, 7")
    k("s_add_u32 s11, s11, s33")
    k("s_add_u32 s33, s11, 8192")
    k("v_lshlrev_b32 v14, 2, v0")
    k("s_mov_b32 exec_hi, 0")
    k("buffer_store_dword v12, v14, s[24:27], s11 offen")
    k("buffer_store_dword v13, v14, s[24:27], s33 offen")
    k("s_mov_b64 exec, -1")
    if not PAIRSYNC: k("s_barrier")
    k(f"s_branch {END}")
    k("PB_PF:")
    if W2_IN_B:
        k("s_cmp_eq_u32 s3, 7"); k("s_cbranch_scc1 PB_W2X")
        k("s_cmp_ge_u32 s2, 224"); k("s_cbranch_scc1 PB_W2X")
        k(f"s_load_dwordx2 s[8:9], s[0:1], {A_W2}")
        k("s_lshl_b32 s12, s2, 1")
        k("s_add_u32 s12, s12, s3")
        k("s_sub_u32 s12, s12, 5")
        k("s_and_b32 s13, s12, 3")
        k("s_lshr_b32 s12, s12, 2")
        k("v_lshrrev_b32 v101, 4, v0")
        k("v_and_b32 v102, 15, v0")
        k("v_lshlrev_b32 v103, 2, v101")
        k("v_xor_b32 v102, v102, v103")
        k("v_lshlrev_b32 v102, 4, v102")
        k("v_lshl_add_u32 v101, v101, 10, v102")
        k("s_lshl_b32 s14, s13, 8")
        k("v_add_u32 v101, s14, v101")
        k("s_lshl_b32 s14, s12, 14")
        k("s_sub_u32 s15, s3, 5")
        k("s_lshl_b32 s15, s15, 12")
        k(f"s_add_u32 s15, s15, {PB_W2}")
        k("s_mov_b32 s16, s15")
        k("s_waitcnt lgkmcnt(0)")
        k.srd(28, 8, 1792*1024)
        for i in range(4):
            k("s_mov_b32 m0, s16")
            k("s_add_u32 s16, s16, 1024")
            k(f"buffer_load_dwordx4 v101, s[28:31], s14 offen {NT} lds")
            k("s_add_u32 s14, s14, 4096")
        k("PB_W2X:")
    if FUSED and W2STAGE and W2RAW and RAWPRE:
        k("s_cmp_eq_u32 s3, 7"); k("s_cbranch_scc1 PB_RAWY")
        k(f"s_load_dwordx2 s[8:9], s[0:1], {A_W2}")
        k("v_lshrrev_b32 v101, 3, v0")
        k("v_and_b32 v102, 7, v0")
        k("v_bfe_u32 v103, v0, 4, 1")
        k("v_lshlrev_b32 v103, 2, v103")
        k("v_xor_b32 v102, v102, v103")
        k("v_lshlrev_b32 v102, 4, v102")
        k("v_lshl_add_u32 v101, v101, 10, v102")
        k("s_lshr_b32 s46, s2, 5")
        k("s_lshl_b32 s46, s46, 7")
        k("s_sub_u32 s47, s3, 5")
        k("s_waitcnt lgkmcnt(0)")
        k.srd(28, 8, 1792*1024)
        for q in range(2):
            k("s_lshl_b32 s48, s47, 1")
            k(f"s_add_u32 s48, s48, {q}")
            k(f"s_mul_i32 s49, s48, {W2S_N*2048}")
            k(f"s_add_u32 s49, s49, {W2S}")
            k(f"s_mul_i32 s48, s48, {28*16*1024}")
            k(f"s_add_u32 s48, s48, {K3_P*16*1024}")
            k("s_add_u32 s48, s48, s46")
            for i in range(2*W2S_N):
                k("s_mov_b32 m0, s49")
                k("s_add_u32 s49, s49, 1024")
                k(f"buffer_load_dwordx4 v101, s[28:31], s48 offen {NT} lds")
                k("s_add_u32 s48, s48, 8192")
        k("PB_RAWY:")
    sync(k, 1)
    if W2_IN_B:
        k("s_cmp_eq_u32 s3, 7"); k("s_cbranch_scc1 PB_W2Y")
        k("s_cmp_ge_u32 s2, 224"); k("s_cbranch_scc1 PB_W2Y")
        k.srd(28, 4, 16*112*1024, WS_W2F)
        k("v_bfe_u32 v101, v0, 2, 2")
        k("v_lshrrev_b32 v102, 5, v0")
        k("v_lshl_add_u32 v102, v102, 2, v101")
        k("v_lshlrev_b32 v102, 8, v102")
        k("v_bfe_u32 v103, v0, 4, 1")
        k("v_lshl_add_u32 v102, v103, 5, v102")
        k("v_and_b32 v103, 3, v0")
        k("v_lshl_add_u32 v102, v103, 3, v102")
        k("v_add_u32 v102, s15, v102")
        k("s_waitcnt vmcnt(0)")
        for a in range(4):
            k(f"v_xor_b32 v103, {a}, v101")
            k(f"v_lshl_add_u32 v103, v103, 6, v102")
            k(f"ds_read_b64_tr_b16 v[{104+4*a}:{104+4*a+1}], v103")
            k(f"ds_read_b64_tr_b16 v[{104+4*a+2}:{104+4*a+3}], v103 offset:2048")
        k(f"s_mul_i32 s14, s13, {4*112*1024}")
        k("s_lshl_b32 s16, s12, 10")
        k("s_add_u32 s14, s14, s16")
        k("s_waitcnt lgkmcnt(0)")
        for a in range(4):
            k(f"buffer_store_dwordx4 v[{104+4*a}:{104+4*a+3}], v10, s[28:31], s14 offen")
            k(f"s_add_u32 s14, s14, {112*1024}")
        k("PB_W2Y:")
    if FUSED: k("s_branch PB_NOZ")
    k("s_cmp_lg_u32 s3, 7")
    k("s_cbranch_scc1 PB_NOZ")
    k("s_cmp_ge_u32 s2, 32")
    k("s_cbranch_scc1 PB_NOZ")
    k.srd(24, 4, 4096, WS_FLAG)
    k("s_lshl_b32 s6, s2, 7")
    k("v_mov_b32 v12, 0")
    k("s_mov_b64 exec, 1")
    k("buffer_store_dword v12, off, s[24:27], s6")
    k("s_mov_b64 exec, -1")
    k("PB_NOZ:")
    k("s_barrier")
    if FUSED and W2STAGE and W2RAW and not RAWPRE:
        k("s_cmp_eq_u32 s3, 7"); k("s_cbranch_scc1 PB_RAWX")
        k(f"s_load_dwordx2 s[8:9], s[0:1], {A_W2}")
        k("v_lshrrev_b32 v101, 3, v0")
        k("v_and_b32 v102, 7, v0")
        k("v_bfe_u32 v103, v0, 4, 1")
        k("v_lshlrev_b32 v103, 2, v103")
        k("v_xor_b32 v102, v102, v103")
        k("v_lshlrev_b32 v102, 4, v102")
        k("v_lshl_add_u32 v101, v101, 10, v102")
        k("s_lshr_b32 s12, s2, 5")
        k("s_lshl_b32 s12, s12, 7")
        k("s_sub_u32 s13, s3, 5")
        k("s_waitcnt lgkmcnt(0)")
        k.srd(28, 8, 1792*1024)
        for q in range(2):
            k("s_lshl_b32 s14, s13, 1")
            k(f"s_add_u32 s14, s14, {q}")
            k(f"s_mul_i32 s15, s14, {W2S_N*2048}")
            k(f"s_add_u32 s15, s15, {W2S}")
            k(f"s_mul_i32 s14, s14, {28*16*1024}")
            k(f"s_add_u32 s14, s14, {K3_P*16*1024}")
            k("s_add_u32 s14, s14, s12")
            for i in range(2*W2S_N):
                k("s_mov_b32 m0, s15")
                k("s_add_u32 s15, s15, 1024")
                k(f"buffer_load_dwordx4 v101, s[28:31], s14 offen {NT} lds")
                k("s_add_u32 s14, s14, 8192")
        k("PB_RAWX:")
    k("s_cmp_lg_u32 s3, 6")
    k("s_cbranch_scc1 PB_NOG")
    k("s_cmp_ge_u32 s2, 8")
    k("s_cbranch_scc1 PB_NOG")
    k.srd(16, 4, 4*12288, WS_MODP)
    k.srd(24, 4, 3072*4, WS_MOD)
    k("v_lshlrev_b32 v12, 2, v0")
    k("s_lshl_b32 s6, s2, 8")
    k(f"s_add_u32 s6, s6, {2560*4}")
    k("s_mov_b32 s7, s6")
    for p in range(4):
        k(f"buffer_load_dword v{13+p}, v12, s[16:19], s7 offen")
        k("s_add_u32 s7, s7, 12288")
    k("s_waitcnt vmcnt(0)")
    k("v_add_f32 v13, v13, v14"); k("v_add_f32 v15, v15, v16"); k("v_add_f32 v13, v13, v15")
    round_bf16(k, "v13", "v13")
    k("buffer_store_dword v13, v12, s[24:27], s6 offen")
    k("PB_NOG:")
    if PB_PREF:
        k("s_lshr_b32 s6, s2, 3")
        k(f"s_mul_i32 s6, s6, {56*1024}")
        k("s_sub_u32 s7, s3, 5")
        k(f"s_mul_i32 s7, s7, {19*1024}")
        k("s_add_u32 s6, s6, s7")
        k("s_mov_b32 s7, s6")
        for i in range(19):
            k(f"buffer_load_dwordx4 v[{16+4*i}:{19+4*i}], v10, s[20:23], s6 offen")
            k("s_add_u32 s6, s6, 1024")
        if PB_PREF2:
            k.srd(24, 4, 16*112*1024, WS_W2F)
            for i in range(19):
                k(f"buffer_load_dwordx4 v[{100+4*i}:{103+4*i}], v10, s[24:27], s7 offen")
                k("s_add_u32 s7, s7, 1024")
    if not PAIRSYNC: k("s_barrier")
    k(f"s_branch {END}")
    k("PB_IDLE:")
    k("s_barrier")
    if not PAIRSYNC: k("s_barrier")

PC_STAT = 65536
PC_UT = PC_STAT + 8192
PC_LDS = PC_UT + 2048
def x_dma_setup(k, rt_sgpr):
    k("v_lshrrev_b32 v2, 3, v0")
    k("v_and_b32 v3, 7, v0")
    k("v_bfe_u32 v4, v0, 4, 1")
    k("v_lshlrev_b32 v4, 2, v4")
    k("v_xor_b32 v3, v3, v4")
    k("v_lshlrev_b32 v3, 4, v3")
    k("v_lshl_add_u32 v3, v2, 12, v3")
    k(f"s_lshl_b32 s14, {rt_sgpr}, 7")
    k("v_add_u32 v3, s14, v3")
def x_frag_addr(k):
    k("v_bfe_u32 v5, v0, 2, 2")
    k("v_and_b32 v6, 3, v0")
    k("v_bfe_u32 v7, v0, 4, 1")
    k("v_lshrrev_b32 v12, 5, v0")
    k("v_lshlrev_b32 v13, 3, v12")
    k("v_add_u32 v13, v13, v5")
    k("v_lshlrev_b32 v13, 7, v13")
    k("v_lshl_add_u32 v13, v7, 5, v13")
    k("v_lshl_add_u32 v13, v6, 3, v13")
    k("v_lshrrev_b32 v14, 1, v5")
    k("s_lshr_b32 s39, s3, 2")
    k("v_xor_b32 v14, s39, v14")
    k("v_lshl_add_u32 v8, v14, 6, v13")
    k("v_xor_b32 v9, 64, v8")

def w2stage_setup(k, dt2):
    k.srd(44, 4, 16*112*1024, WS_W2F)
    k("s_and_b32 s52, s3, 3")
    k("s_lshr_b32 s53, s3, 2")
    k(f"s_mul_i32 s53, s53, {W2S_N//2}")
    k(f"s_mul_i32 s54, s52, {2*W2S_N*1024}")
    k("s_lshl_b32 s55, s53, 10")
    k("s_add_u32 s54, s54, s55")
    k(f"s_add_u32 s54, s54, {W2S}")
    k("s_mul_i32 s52, s52, 28")
    k("s_add_u32 s52, s52, s53")
    k(f"s_add_u32 s52, s52, {K3_P}")
    k(f"s_mul_i32 s53, {dt2}, 224")
    k("s_add_u32 s52, s52, s53")
    k("s_lshl_b32 s52, s52, 10")
    k(f"s_add_u32 s53, s52, {112*1024}")
    k(f"s_add_u32 s55, s54, {W2S_N*1024}")
def w2stage_dma(k, idx):
    H = W2S_N//2
    a, i = idx // H, idx % H
    src, dst = f"s{52+a}", f"s{54+a}"
    if i == 4:
        k(f"s_add_u32 {src}, {src}, 4096"); k(f"s_add_u32 {dst}, {dst}, 4096")
    if i in (0, 4):
        k(f"s_mov_b32 m0, {dst}"); k("s_nop 0")
    k(f"buffer_load_dwordx4 v4, s[44:47], {src} offen offset:{(i%4)*1024} lds")

def phase_c(k, END):
    k("s_cmp_ge_u32 s2, 224")
    k("s_cbranch_scc1 PC_HELP")
    k("s_and_b32 s11, s2, 31")
    k("s_lshr_b32 s12, s2, 5")
    k("s_lshl_b32 s13, s12, 3")
    k("s_add_u32 s13, s13, s3")
    x_dma_setup(k, "s11")
    k("v_lshlrev_b32 v4, 4, v0")
    k("s_lshl_b32 s36, s3, 15")
    k("s_lshl_b32 s37, s3, 10")
    k("s_lshl_b32 s38, s13, 15")
    k("s_and_b32 s15, s3, 3")
    k("s_lshl_b32 s15, s15, 8")
    k("s_lshl_b32 s40, s12, 10")
    k("s_add_u32 s15, s15, s40")
    k("s_lshr_b32 s40, s3, 2")
    k("s_lshl_b32 s40, s40, 13")
    k("s_add_u32 s15, s15, s40")
    k("v_lshlrev_b32 v10, 2, v0")
    k("s_waitcnt lgkmcnt(0)")
    k.srd(16, 4, 0x200000, WS_X1S)
    k.srd(20, 4, 56*32*1024, WS_W1F)
    k.srd(24, 4, 0x10000, WS_UT)
    WF = 128
    seq = []
    def dma(g):
        k("s_mov_b32 m0, s37")
        k("s_add_u32 s37, s37, 8192")
        k("buffer_load_dwordx4 v3, s[16:19], s36 offen lds")
        k("s_add_u32 s36, s36, 0x40000")
        seq.append(("D", g))
    def wld(kk):
        k(f"buffer_load_dwordx4 v[{WF+4*kk}:{WF+4*kk+3}], v4, s[20:23], s38 offen offset:{(kk%4)*1024}")
        if kk % 4 == 3: k("s_add_u32 s38, s38, 4096")
        seq.append(("W", kk))
    def after(item):
        return len(seq) - 1 - seq.index(item)
    AH = K2_AH
    if FUSED:
        x_frag_addr(k)
        for i in range(32): k(f"v_mov_b32 v{64+i}, 0")
        if W7LATE:
            k("s_cmp_eq_u32 s3, 7")
            k("s_cbranch_scc1 PC_W7")
            for kk in range(0, AH): wld(kk)
            k.dstamp("C", 0)
            sync(k, 2, may_be_7=False)
            k("s_branch PC_JOIN")
            k("PC_W7:")
            sync(k, 2)
            n0 = len(seq)
            for kk in range(0, AH): wld(kk)
            del seq[n0:]
            k("PC_JOIN:")
        else:
            for kk in range(0, AH): wld(kk)
            k.dstamp("C", 0)
            sync(k, 2)
        k.fstamp(5)
        k.dstamp("C", 1)
        for g in range(4): dma(g)
        for dq in range(4):
            k(f"buffer_load_dword v{96+dq}, v10, s[24:27], s15 offen"); seq.append(("U", dq))
            k("s_add_u32 s15, s15, 16384")
        for g in range(4, 8): dma(g)
    else:
        dma(0)
        for kk in range(0, 4): wld(kk)
        dma(1)
        for kk in range(4, 8): wld(kk)
        dma(2); dma(3)
        for dq in range(4):
            k(f"buffer_load_dword v{96+dq}, v10, s[24:27], s15 offen"); seq.append(("U", dq))
            k("s_add_u32 s15, s15, 16384")
        for kk in range(8, AH): wld(kk)
        for g in range(4, 8): dma(g)
    k.srd(28, 4, 64*112*1024, WS_HID)
    k.srd(32, 4, 2048*8, WS_ST2)
    k.srd(48, 4, 4096, (WS_SYNC + 0x2000) if FUSED else WS_FLAG)
    if not GRAN: k.srd(44, 4, 16*112*1024, WS_W2F)
    k.stamp(0)
    ACC = 64
    XF = [16, 24, 32]
    if not FUSED:
        x_frag_addr(k)
        for i in range(32): k(f"v_mov_b32 v{ACC+i}, 0")
    def xloads(kk):
        st = kk % 3
        out = []
        for bp in range(2):
            out.append(f"ds_read_b64_tr_b16 v[{XF[st]+4*bp}:{XF[st]+4*bp+1}], v{8+bp} offset:{kk*2048}")
            out.append(f"ds_read_b64_tr_b16 v[{XF[st]+4*bp+2}:{XF[st]+4*bp+3}], v{8+bp} offset:{kk*2048+512}")
        return out
    k(f"s_waitcnt vmcnt({min(after(('W',0)), after(('D',0)))})")
    k("s_barrier")
    k.stamp(1)
    k.dstamp("C", 2)
    if CPRIO:
        k("s_cmp_lt_u32 s3, 4"); k("s_cbranch_scc1 PC_NOPRIO"); k(f"s_setprio {CPRIO}"); k("PC_NOPRIO:")
    for x in xloads(0): k(x)
    for x in xloads(1): k(x)
    for kk in range(32):
        st = kk % 3
        need = [("W", kk)]
        bar = None
        if kk == 2: bar = ("D", 1)
        if kk == 6: bar = ("D", 3)
        if kk == 14: bar = ("D", 7)
        cnt = after(("W", kk))
        if bar: cnt = min(cnt, after(bar))
        k(f"s_waitcnt vmcnt({cnt}) lgkmcnt({4 if kk < 31 else 0})")
        if kk == 10:
            k(f"s_waitcnt vmcnt({after(('U',3))})")
            k("v_add_f32 v96, v96, v97"); k("v_add_f32 v98, v98, v99"); k("v_add_f32 v96, v96, v98")
            k("s_lshl_b32 s15, s3, 8")
            k(f"s_add_u32 s15, s15, {PC_UT}")
            k("v_add_u32 v97, s15, v10")
            k("ds_write_b32 v97, v96")
            k("s_waitcnt lgkmcnt(0)")
        if bar: k("s_barrier")
        if kk % 4 == 0 and kk > 0: k.stamp(1 + kk//4)
        if kk in (8, 16, 24): k.dstamp("C", 2 + kk//8)
        nxt = xloads(kk+2) if kk+2 < 32 else []
        for bp in range(2):
            k(f"v_mfma_f32_32x32x16_bf16 v[{ACC+16*bp}:{ACC+16*bp+15}], v[{WF+4*kk}:{WF+4*kk+3}], v[{XF[st]+4*bp}:{XF[st]+4*bp+3}], v[{ACC+16*bp}:{ACC+16*bp+15}]")
            for x in nxt[2*bp:2*bp+2]: k(x)
        if kk + AH < 32: wld(kk + AH)
        if FUSED and W2STAGE and not W2RAW:
            if kk == ZK0 - 1: w2stage_setup(k, "s12")
            if ZSTEP == 2 and ZK0 <= kk < ZK0 + W2S_N//2:
                for idx in (2*(kk-ZK0), 2*(kk-ZK0)+1):
                    w2stage_dma(k, idx); seq.append(("Z", idx))
            if ZSTEP == 1 and ZK0 <= kk < ZK0 + W2S_N:
                for idx in (kk-ZK0,):
                    w2stage_dma(k, idx); seq.append(("Z", idx))
        if GRAN:
            if kk == 26:
                k("v_and_b32 v15, 31, v0")
                k("s_lshl_b32 s15, s11, 6")
                k("s_lshr_b32 s41, s3, 2")
                k("s_lshl_b32 s41, s41, 5")
                k("s_add_u32 s15, s15, s41")
                k("v_add_u32 v15, s15, v15")
                k("v_lshlrev_b32 v15, 3, v15")
                k("v_xor_b32 v11, 0x100, v15")
                k("buffer_load_dwordx2 v[104:105], v15, s[32:35], 0 offen sc1"); seq.append(("S", 0))
                k("buffer_load_dwordx2 v[106:107], v11, s[32:35], 0 offen sc1"); seq.append(("S", 1))
        else:
            if kk == 32 - AH:
                k("s_lshl_b32 s15, s11, 7")
                k("buffer_load_dword v100, off, s[48:51], s15 sc1"); seq.append(("F", 0))
            if kk == 32 - AH + 5:
                k(f"s_waitcnt vmcnt({after(('F',0))})")
                k(f"s_mov_b32 s42, {SPIN_MAX}")
                k("PC_POLL:")
                k("v_readfirstlane_b32 s41, v100")
                k("s_cmp_lg_u32 s41, 0")
                k("s_cbranch_scc1 PC_GOT")
                k("s_sub_u32 s42, s42, 1")
                k("s_cbranch_scc1 PC_GOT")
                k("s_sleep 8")
                k("buffer_load_dword v100, off, s[48:51], s15 sc1")
                k("s_waitcnt vmcnt(0)")
                k("s_branch PC_POLL")
                k("PC_GOT:")
                k.dstamp("C", 6)
                k("v_and_b32 v15, 31, v0")
                k("s_lshl_b32 s15, s11, 6")
                k("s_lshr_b32 s41, s3, 2")
                k("s_lshl_b32 s41, s41, 5")
                k("s_add_u32 s15, s15, s41")
                k("v_add_u32 v15, s15, v15")
                k("v_lshlrev_b32 v15, 3, v15")
                k("v_xor_b32 v11, 0x100, v15")
                k("buffer_load_dwordx2 v[104:105], v15, s[32:35], 0 offen sc1"); seq.append(("S", 0))
                k("buffer_load_dwordx2 v[106:107], v11, s[32:35], 0 offen sc1"); seq.append(("S", 1))
                if PC_PREF:
                    k("s_lshr_b32 s15, s2, 3")
                    k("s_lshl_b32 s15, s15, 16")
                    k("s_lshl_b32 s41, s3, 13")
                    k("s_add_u32 s15, s15, s41")
                    for i in range(8):
                        k(f"buffer_load_dwordx4 v[{108+4*(i%4)}:{111+4*(i%4)}], v4, s[44:47], s15 offen offset:{(i%4)*1024}"); seq.append(("P", i))
                        if i == 3: k("s_add_u32 s15, s15, 4096")

    k.stamp(9)
    k.fstamp(6)
    k.dstamp("C", 7)
    k("s_lshl_b32 s15, s3, 7")
    k(f"s_add_u32 s15, s15, {PC_UT}")
    k("v_lshlrev_b32 v14, 4, v12")
    k("v_add_u32 v14, s15, v14")
    for g in range(4):
        k(f"ds_read_b128 v[{160+4*g}:{160+4*g+3}], v14 offset:{g*32}")
        k(f"ds_read_b128 v[{176+4*g}:{176+4*g+3}], v14 offset:{1024+g*32}")
    k(f"s_waitcnt vmcnt({after(('S',1))}) lgkmcnt(0)")
    if GRAN:
        k(f"s_mov_b32 s42, {SPIN_MAX}")
        k("PC_GP:")
        k("v_cmp_eq_u32 vcc, 0, v104")
        k("v_cmp_eq_u32 s[46:47], 0, v106")
        k("s_nop 1")
        k("s_or_b64 vcc, vcc, s[46:47]")
        k("s_cbranch_scc0 PC_GG")
        k("s_sub_u32 s42, s42, 1")
        k("s_cbranch_scc1 PC_GG")
        k("s_sleep 2")
        k("buffer_load_dwordx2 v[104:105], v15, s[32:35], 0 offen sc1")
        k("buffer_load_dwordx2 v[106:107], v11, s[32:35], 0 offen sc1")
        k("s_waitcnt vmcnt(0)")
        k("s_branch PC_GP")
        k("PC_GG:")
    k.stamp(10)
    k.dstamp("C", 8)
    for bp in range(2):
        a = ACC + 16*bp
        rs, mn = 104+2*bp, 105+2*bp
        for i in range(16): k(f"v_fma_f32 v{a+i}, -v{mn}, v{160+i}, v{a+i}")
        for i in range(16): k(f"v_fma_f32 v{a+i}, v{a+i}, v{rs}, v{176+i}")
        o = 200 + 8*bp
        for i in range(8): k(f"v_cvt_pk_bf16_f32 v{o+i}, v{a+2*i}, v{a+2*i+1}")
        for i in range(8): k(f"v_pk_max_i16 v{o+i}, v{o+i}, 0")
        k("s_lshr_b32 s15, s3, 2")
        k(f"s_xor_b32 s15, s15, {bp}")
        k("s_lshl_b32 s41, s11, 1")
        k("s_add_u32 s15, s15, s41")
        k(f"s_mul_i32 s15, s15, {112*1024}")
        k("s_lshl_b32 s41, s13, 11")
        k("s_add_u32 s15, s15, s41")
        k(f"buffer_store_dwordx4 v[{o}:{o+3}], v4, s[28:31], s15 offen")
        k(f"buffer_store_dwordx4 v[{o+4}:{o+7}], v4, s[28:31], s15 offen offset:1024")
    if CPRIO: k("s_setprio 0")
    k(f"s_branch {END}")

    k("PC_HELP:")
    k("s_sub_u32 s11, s2, 224")
    x_dma_setup(k, "s11")
    k("s_lshl_b32 s36, s3, 15")
    k("s_lshl_b32 s37, s3, 10")
    k("s_waitcnt lgkmcnt(0)")
    sync(k, 2)
    k.dstamp("C", 1)
    k.srd(16, 4, 0x200000, WS_X1T)
    for g in range(8):
        k("s_mov_b32 m0, s37")
        k("s_add_u32 s37, s37, 8192")
        k("buffer_load_dwordx4 v3, s[16:19], s36 offen lds")
        k("s_add_u32 s36, s36, 0x40000")
    k.srd(32, 4, 0x200000, WS_X1R)
    k.srd(20, 4, 2048*8, WS_ST2)
    k.srd(48, 4, 4096, (WS_SYNC + 0x2000) if FUSED else WS_FLAG)
    x_frag_addr(k)
    k("s_lshl_b32 s15, s3, 13")
    k("v_add_u32 v46, s15, v8")
    k("v_add_u32 v47, s15, v9")
    k("v_and_b32 v54, 31, v0")
    k("v_lshlrev_b32 v54, 3, v54")
    k("v_lshl_add_u32 v54, v12, 9, v54")
    k("s_lshl_b32 s15, s11, 1")
    k("s_lshr_b32 s41, s3, 2")
    k("s_add_u32 s15, s15, s41")
    k("s_lshl_b32 s15, s15, 15")
    k("s_lshl_b32 s41, s3, 12")
    k("s_add_u32 s15, s15, s41")
    k("s_xor_b32 s56, s15, 0x8000")
    k("s_mov_b32 s43, 0x3f803f80")
    for i in range(8): k(f"v_mov_b32 v{60+i}, 0")
    k("s_waitcnt vmcnt(0)")
    k("s_barrier")
    if FUSED and W2STAGE and not W2RAW:
        k("v_lshlrev_b32 v4, 4, v0")
        k("s_mov_b32 s16, 7")
        w2stage_setup(k, "s16")
        for idx in range(W2S_N): w2stage_dma(k, idx)
    k.dstamp("C", 2)
    for bp in range(2):
        for s in range(4):
            r = 128 + 16*bp + 4*s
            k(f"ds_read_b64_tr_b16 v[{r}:{r+1}], v{46+bp} offset:{s*2048}")
            k(f"ds_read_b64_tr_b16 v[{r+2}:{r+3}], v{46+bp} offset:{s*2048+512}")
        k("s_waitcnt lgkmcnt(0)")
    for bp in range(2):
        for j in range(16):
            r = 128 + 16*bp + j
            k(f"v_dot2_f32_bf16 v{60+4*bp+(j&1)}, v{r}, s43, v{60+4*bp+(j&1)}")
            k(f"v_dot2_f32_bf16 v{62+4*bp+(j&1)}, v{r}, v{r}, v{62+4*bp+(j&1)}")
    k("s_nop 2")
    for bp in range(2):
        k(f"v_add_f32 v{70+2*bp}, v{60+4*bp}, v{61+4*bp}")
        k(f"v_add_f32 v{71+2*bp}, v{62+4*bp}, v{63+4*bp}")
    k("v_lshlrev_b32 v15, 3, v0")
    k("s_lshr_b32 s41, s3, 2")
    k("s_lshl_b32 s41, s41, 12")
    k("s_lshl_b32 s42, s3, 9")
    k("s_add_u32 s41, s41, s42")
    k(f"s_add_u32 s41, s41, {PC_STAT}")
    k("v_add_u32 v48, s41, v15")
    k("v_xor_b32 v49, 0x1000, v48")
    k("ds_write_b64 v48, v[70:71]")
    k("ds_write_b64 v49, v[72:73]")
    k("s_waitcnt lgkmcnt(0)")
    k("s_barrier")
    k("s_cmp_eq_u32 s3, 0")
    k("s_cbranch_scc1 PC_H0")
    k("PC_HX:")
    for bp in range(2):
        so = "s15" if bp == 0 else "s56"
        for s in range(4):
            r = 128 + 16*bp + 4*s
            off = (s//2)*2048 + (s%2)*1024
            k(f"buffer_store_dwordx2 v[{r}:{r+1}], v54, s[32:35], {so} offen offset:{off}")
            k(f"buffer_store_dwordx2 v[{r+2}:{r+3}], v54, s[32:35], {so} offen offset:{off+256}")
    k(f"s_branch {END}")
    k("PC_H0:")
    k.dstamp("C", 3)
    k("v_lshrrev_b32 v13, 5, v0")
    k("v_and_b32 v14, 31, v0")
    k("v_lshlrev_b32 v13, 12, v13")
    k("v_lshl_add_u32 v13, v14, 3, v13")
    k(f"v_add_u32 v13, {PC_STAT}, v13")
    for j in range(16):
        k(f"ds_read_b64 v[{16+2*j}:{17+2*j}], v13 offset:{j*256}")
        if j == 14: k("s_waitcnt lgkmcnt(0)")
    k("s_waitcnt lgkmcnt(0)")
    for st in [8, 4, 2, 1]:
        for j in range(st):
            k(f"v_add_f32 v{16+2*j}, v{16+2*j}, v{16+2*(j+st)}")
            k(f"v_add_f32 v{17+2*j}, v{17+2*j}, v{17+2*(j+st)}")
    ln_finish(k, "v16", "v17", "v18", "v19", ["v20", "v21"])
    k("v_or_b32 v18, 1, v18")
    k("s_lshl_b32 s16, s11, 9")
    k("v_lshlrev_b32 v13, 3, v0")
    k("buffer_store_dwordx2 v[18:19], v13, s[20:23], s16 offen sc1")
    if not GRAN:
        k("s_waitcnt vmcnt(0)")
        k("s_lshl_b32 s16, s11, 7")
        k("v_mov_b32 v13, 1")
        k("s_mov_b64 exec, 1")
        k("buffer_store_dword v13, off, s[48:51], s16 sc1")
        k("s_mov_b64 exec, -1")
    k.dstamp("C", 4)
    k("s_branch PC_HX")

W2S = 77824
W2S_N = 10
PD_OUT = 4*3*4096
PD_LDS = PD_OUT + 8192
def phase_d(k, END):
    k("s_cmp_ge_u32 s3, 4")
    k("s_cbranch_scc1 PD_IDLE")
    k(f"s_load_dwordx2 s[6:7], s[0:1], {A_OUT}")
    k("s_and_b32 s11, s2, 31")
    k("s_lshr_b32 s12, s2, 5")
    k("v_lshlrev_b32 v2, 4, v0")
    k(f"s_mul_i32 s13, s12, {2*112*1024}")
    k("v_add_u32 v3, s13, v2")
    k(f"v_add_u32 v4, {112*1024}, v3")
    k(f"s_mul_i32 s13, s11, {2*112*1024}")
    k("v_add_u32 v5, s13, v2")
    k(f"v_add_u32 v6, {112*1024}, v5")
    k(f"s_mul_i32 s14, s3, {28*1024}")
    k("s_waitcnt lgkmcnt(0)")
    k.srd(16, 4, 16*112*1024, WS_W2F)
    k.srd(20, 4, 64*112*1024, WS_HID)
    ACC = 16; RING = 80; P = K3_P
    seq = []
    def after(item): return len(seq) - 1 - seq.index(item)
    sA, sB = "s14", "s41"
    k("s_mov_b32 s41, s14")
    def issueA(step):
        sl = RING + 16*(step % P)
        k(f"buffer_load_dwordx4 v[{sl}:{sl+3}], v3, s[16:19], s14 offen"); seq.append(("A0", step))
        k(f"buffer_load_dwordx4 v[{sl+4}:{sl+7}], v4, s[16:19], s14 offen"); seq.append(("A1", step))
        k("s_add_u32 s14, s14, 1024")
    def issueB(step):
        sl = RING + 16*(step % P)
        k(f"buffer_load_dwordx4 v[{sl+8}:{sl+11}], v5, s[20:23], s41 offen"); seq.append(("B0", step))
        k(f"buffer_load_dwordx4 v[{sl+12}:{sl+15}], v6, s[20:23], s41 offen"); seq.append(("B1", step))
        k("s_add_u32 s41, s41, 1024")
    if FUSED:
        for st_ in range(P): issueA(st_)
        k.srd(24, 4, 0x200000, WS_X1R)
        k.srd(28, 6, 0x200000)
        k.srd(32, 4, 3072*4, WS_MOD)
        k("s_lshr_b32 s15, s3, 1")
        k("s_and_b32 s36, s3, 1")
        k("v_and_b32 v7, 31, v0")
        k("v_lshrrev_b32 v8, 5, v0")
        k("s_lshl_b32 s37, s11, 1")
        k("s_add_u32 s37, s37, s36")
        k("s_lshl_b32 s37, s37, 15")
        k("s_lshl_b32 s38, s12, 1")
        k("s_add_u32 s38, s38, s15")
        k("s_lshl_b32 s39, s38, 11")
        k("s_add_u32 s37, s37, s39")
        k("v_lshlrev_b32 v10, 3, v0")
        k("v_lshlrev_b32 v9, 4, v8")
        k("s_lshl_b32 s38, s38, 7")
        k(f"s_add_u32 s38, s38, {2560*4}")
        for g in range(4):
            k(f"buffer_load_dwordx4 v[{216+4*g}:{216+4*g+3}], v9, s[32:35], s38 offen offset:{g*32}"); seq.append(("G", g))
        if W2STAGE and W2RAW and W2S2:
            k(f"s_load_dwordx2 s[42:43], s[0:1], {A_W2}")
            k("v_lshrrev_b32 v11, 3, v0")
            k("v_and_b32 v13, 7, v0")
            k("v_bfe_u32 v14, v0, 4, 1")
            k("v_lshlrev_b32 v14, 2, v14")
            k("v_xor_b32 v13, v13, v14")
            k("v_lshlrev_b32 v13, 4, v13")
            k("v_lshl_add_u32 v11, v11, 10, v13")
            k(f"s_mul_i32 s44, s3, {28*16*1024}")
            k(f"s_add_u32 s44, s44, {(K3_P + W2S_N)*16*1024}")
            k("s_lshl_b32 s45, s12, 7")
            k("s_add_u32 s44, s44, s45")
            k(f"s_mul_i32 s45, s3, {W2S2*2048}")
            k("s_waitcnt lgkmcnt(0)")
            k.srd(48, 42, 1792*1024)
            for i in range(2*W2S2):
                k("s_mov_b32 m0, s45")
                k("s_add_u32 s45, s45, 1024")
                k(f"buffer_load_dwordx4 v11, s[48:51], s44 offen {NT} lds"); seq.append(("Z", i))
                k("s_add_u32 s44, s44, 8192")
        for i in range(64): k(f"v_mov_b32 v{ACC+i}, 0")
        k(f"s_mul_i32 s39, s3, {2*W2S_N*1024}")
        k(f"s_add_u32 s39, s39, {W2S}")
        if W2RAW:
            k("v_bfe_u32 v13, v0, 2, 2")
            k("v_lshrrev_b32 v14, 5, v0")
            k("v_lshl_add_u32 v14, v14, 2, v13")
            k("v_lshlrev_b32 v14, 7, v14")
            k("v_bfe_u32 v15, v0, 4, 1")
            k("v_lshl_add_u32 v14, v15, 5, v14")
            k("v_and_b32 v15, 3, v0")
            k("v_lshl_add_u32 v14, v15, 3, v14")
            k("v_lshrrev_b32 v13, 1, v13")
            k("v_lshl_add_u32 v14, v13, 6, v14")
            k("v_add_u32 v12, s39, v14")
            k("v_xor_b32 v13, 64, v12")
            if W2S2:
                k(f"s_mul_i32 s39, s3, {W2S2*2048}")
                k("v_add_u32 v14, s39, v14")
                k("v_xor_b32 v15, 64, v14")
        else:
            k("v_add_u32 v12, s39, v2")
        sync(k, 3, may_be_7=False)
        k.fstamp(8)
        for st_ in range(2): issueB(st_)
        for g in range(4):
            k(f"buffer_load_dwordx2 v[{208+2*g}:{208+2*g+1}], v10, s[24:27], s37 offen offset:{g*512}"); seq.append(("X", g))
        for st_ in range(2, P): issueB(st_)
    else:
        for st_ in range(2): issueA(st_); issueB(st_)
        k.srd(24, 4, 0x200000, WS_X1R)
        k.srd(28, 6, 0x200000)
        k.srd(32, 4, 3072*4, WS_MOD)
        k("s_lshr_b32 s15, s3, 1")
        k("s_and_b32 s36, s3, 1")
        k("v_and_b32 v7, 31, v0")
        k("v_lshrrev_b32 v8, 5, v0")
        k("s_lshl_b32 s37, s11, 1")
        k("s_add_u32 s37, s37, s36")
        k("s_lshl_b32 s37, s37, 15")
        k("s_lshl_b32 s38, s12, 1")
        k("s_add_u32 s38, s38, s15")
        k("s_lshl_b32 s39, s38, 11")
        k("s_add_u32 s37, s37, s39")
        k("v_lshlrev_b32 v10, 3, v0")
        for g in range(4):
            k(f"buffer_load_dwordx2 v[{208+2*g}:{208+2*g+1}], v10, s[24:27], s37 offen offset:{g*512}"); seq.append(("X", g))
        k("v_lshlrev_b32 v9, 4, v8")
        k("s_lshl_b32 s38, s38, 7")
        k(f"s_add_u32 s38, s38, {2560*4}")
        for g in range(4):
            k(f"buffer_load_dwordx4 v[{216+4*g}:{216+4*g+3}], v9, s[32:35], s38 offen offset:{g*32}"); seq.append(("G", g))
        for st_ in range(2, P): issueA(st_); issueB(st_)
        for i in range(64): k(f"v_mov_b32 v{ACC+i}, 0")
    k.stamp(0)
    for s in range(28):
        NS = W2S_N + (W2S2 if W2RAW else 0)
        staged = FUSED and W2STAGE and P <= s < P + NS
        if staged:
            nyoung = (4 if W2RAW else 2)*min(P-1, (P + NS - 1) - s)
            k(f"s_waitcnt vmcnt({after(('B1', s))}) lgkmcnt({min(nyoung, 12)})")
        else:
            k(f"s_waitcnt vmcnt({min(after(('A1', s)), after(('B1', s)))})")
        if s == 0: k.stamp(1)
        sl = RING + 16*(s % P)
        for a in range(2):
            for b in range(2):
                c = ACC + 16*(a*2+b)
                k(f"v_mfma_f32_32x32x16_bf16 v[{c}:{c+15}], v[{sl+4*a}:{sl+4*a+3}], v[{sl+8+4*b}:{sl+8+4*b+3}], v[{c}:{c+15}]")
        if s + P < 28:
            if FUSED and W2STAGE and P <= s + P < P + NS:
                sl2 = RING + 16*((s + P) % P)
                if W2RAW:
                    if s == W2S_N and W2S2:
                        k(f"s_waitcnt vmcnt({after(('Z', 2*W2S2-1))})")
                    base, ss = (12, s) if s < W2S_N else (14, s - W2S_N)
                    for a in range(2):
                        k(f"ds_read_b64_tr_b16 v[{sl2+4*a}:{sl2+4*a+1}], v{base+a} offset:{ss*2048}")
                        k(f"ds_read_b64_tr_b16 v[{sl2+4*a+2}:{sl2+4*a+3}], v{base+a} offset:{ss*2048+1024}")
                else:
                    k(f"ds_read_b128 v[{sl2}:{sl2+3}], v12 offset:{s*1024}")
                    k(f"ds_read_b128 v[{sl2+4}:{sl2+7}], v12 offset:{W2S_N*1024 + s*1024}")
                k("s_add_u32 s14, s14, 1024")
                issueB(s + P)
            else:
                issueA(s + P); issueB(s + P)
    k.fstamp(9)
    if FUSED and W2STAGE and W2RAW and W2S2: k("s_barrier")
    k.stamp(2)
    k(f"s_mul_i32 s39, s3, {3*4096}")
    k("v_add_u32 v11, s39, v2")
    for t in range(4):
        k(f"s_sub_u32 s39, s3, {t+1}")
        k("s_and_b32 s39, s39, 3")
        k(f"s_add_u32 s39, s39, {3*t}")
        k("s_lshl_b32 s39, s39, 12")
        k(f"v_add_u32 v{12+t}, s39, v2")
    for t in range(4):
        k(f"s_cmp_eq_u32 s3, {t}")
        k(f"s_cbranch_scc1 PD_SKIP{t}")
        for qd in range(4):
            k(f"ds_write_b128 v{12+t}, v[{ACC+16*t+4*qd}:{ACC+16*t+4*qd+3}] offset:{qd*1024}")
        k(f"PD_SKIP{t}:")
    for t in range(4):
        k(f"s_cmp_eq_u32 s3, {t}")
        k(f"s_cbranch_scc0 PD_MV{t}")
        for i in range(16): k(f"v_mov_b32 v{80+i}, v{ACC+16*t+i}")
        k(f"PD_MV{t}:")
    for g in range(4):
        k(f"v_lshlrev_b32 v{150+4*g}, 16, v{208+2*g}")
        k(f"v_and_b32 v{151+4*g}, 0xffff0000, v{208+2*g}")
        k(f"v_lshlrev_b32 v{152+4*g}, 16, v{208+2*g+1}")
        k(f"v_and_b32 v{153+4*g}, 0xffff0000, v{208+2*g+1}")
    k("s_waitcnt lgkmcnt(0)")
    k("s_barrier")
    for sidx in range(3):
        for qd in range(4):
            r = 96 + 16*sidx + 4*qd
            k(f"ds_read_b128 v[{r}:{r+3}], v11 offset:{sidx*4096+qd*1024}")
    for sidx in range(3):
        k(f"s_waitcnt lgkmcnt({8-4*sidx})")
        for i in range(16): k(f"v_add_f32 v{80+i}, v{80+i}, v{96+16*sidx+i}")
    k.stamp(3)
    k("s_lshl_b32 s39, s36, 5")
    k("v_add_u32 v13, s39, v7")
    k("v_and_b32 v14, 7, v13")
    k("s_lshl_b32 s39, s15, 2")
    k("v_xor_b32 v14, s39, v14")
    k("v_lshlrev_b32 v13, 7, v13")
    k("v_lshl_add_u32 v13, v8, 3, v13")
    k(f"v_add_u32 v13, {PD_OUT}, v13")
    for g in range(4):
        for r in range(4):
            k(f"v_fma_f32 v{150+4*g+r}, v{80+4*g+r}, v{216+4*g+r}, v{150+4*g+r}")
        k(f"v_cvt_pk_bf16_f32 v{170+2*g}, v{150+4*g}, v{151+4*g}")
        k(f"v_cvt_pk_bf16_f32 v{170+2*g+1}, v{152+4*g}, v{153+4*g}")
        k(f"v_xor_b32 v15, {g}, v14")
        k("v_lshl_add_u32 v15, v15, 4, v13")
        k(f"ds_write_b64 v15, v[{170+2*g}:{170+2*g+1}]")
    k("v_lshrrev_b32 v13, 3, v0")
    k("s_lshl_b32 s39, s3, 4")
    k("v_add_u32 v13, s39, v13")
    k("v_and_b32 v14, 7, v0")
    k("v_and_b32 v15, 7, v13")
    k("v_xor_b32 v15, v14, v15")
    k("v_lshlrev_b32 v15, 4, v15")
    k("v_lshl_add_u32 v15, v13, 7, v15")
    k(f"v_add_u32 v15, {PD_OUT}, v15")
    k("s_lshl_b32 s39, s11, 6")
    k("v_add_u32 v13, s39, v13")
    k("v_lshlrev_b32 v13, 10, v13")
    k("v_lshl_add_u32 v13, v14, 4, v13")
    k("s_lshl_b32 s39, s12, 7")
    k("s_add_u32 s40, s39, 8192")
    k("s_waitcnt lgkmcnt(0)")
    k("s_barrier")
    k("ds_read_b128 v[80:83], v15")
    k("ds_read_b128 v[84:87], v15 offset:1024")
    k("s_waitcnt lgkmcnt(0)")
    k(f"buffer_store_dwordx4 v[80:83], v13, s[28:31], s39 offen {OUTF}")
    k(f"buffer_store_dwordx4 v[84:87], v13, s[28:31], s40 offen {OUTF}")
    k(f"s_branch {END}")
    k("PD_IDLE:")
    if FUSED and (PD_RELOAD or PD_PREFW):
        k("s_cmp_eq_u32 s3, 7")
        k("s_cbranch_scc1 PD_NOPF")
        k("v_lshlrev_b32 v2, 4, v0")
        k("s_sub_u32 s6, s3, 4")
        if PD_RELOAD:
            k("s_cmp_ge_u32 s2, 224")
            k("s_cbranch_scc1 PD_NORL")
            k.srd(20, 4, 64*112*1024, WS_HID)
            k("s_and_b32 s11, s2, 31")
            k("s_lshr_b32 s12, s2, 5")
            k(f"s_mul_i32 s13, s11, {2*112*1024}")
            k("s_lshl_b32 s14, s12, 14")
            k("s_add_u32 s13, s13, s14")
            k(f"s_mul_i32 s14, s6, {11*1024}")
            for i in range(11):
                k(f"s_add_u32 s15, s14, {i*1024}")
                k("s_cmp_ge_u32 s15, 0x4000")
                k(f"s_cselect_b32 s16, {112*1024 - 0x4000}, 0")
                k("s_add_u32 s15, s15, s16")
                k("s_add_u32 s15, s15, s13")
                k(f"buffer_load_dwordx4 v[{16+4*i}:{19+4*i}], v2, s[20:23], s15 offen")
            k("PD_NORL:")
        if PD_PREFW:
            k.srd(16, 4, 16*112*1024, WS_W2F)
            k("s_lshr_b32 s13, s2, 3")
            k(f"s_mul_i32 s13, s13, {56*1024}")
            k(f"s_mul_i32 s14, s6, {19*1024}")
            k("s_add_u32 s13, s13, s14")
            for i in range(19):
                k(f"buffer_load_dwordx4 v[{64+4*i}:{67+4*i}], v2, s[16:19], s13 offen")
                k("s_add_u32 s13, s13, 1024")
        k("PD_NOPF:")
    sync(k, 3)
    if FUSED and W2STAGE and W2RAW and W2S2: k("s_barrier")
    k("s_barrier")
    k("s_barrier")

def gen_kernel(name, phase, tag, vgpr, first=False, last=False):
    k = K()
    header(k, name)
    END = f"{tag}_END"
    entry(k, END, first)
    phase(k, END)
    k(f"{END}:")
    k("s_endpgm")
    if last: k("CODE_END:")
    return k.text() + kd(name, vgpr)

def gen_fused(name):
    global WBL2
    WBL2 = tuple(i for i, f in ((1, WBL2_1), (3, WBL2_3)) if f)
    k = K()
    header(k, name)
    entry(k, "F_END", first=True)
    k.plainst = 1 in WBL2
    phase_a(k, "PA_END")
    k.plainst = False
    k("PA_END:")
    k.fstamp(0)
    arrive(k, 1)
    phase_b(k, "PB_END")
    k("PB_END:")
    k.fstamp(4)
    arrive(k, 2)
    k.plainst = 3 in WBL2
    phase_c(k, "PC_END")
    k.plainst = False
    k("PC_END:")
    k.fstamp(7)
    k.dstamp("C", 9)
    arrive(k, 3)
    phase_d(k, "PD_END")
    k("PD_END:")
    k("F_END:")
    k("s_endpgm")
    k("CODE_END:")
    return k.text() + kd(name, 256, sgpr=102)

def add_prof(text, name, idx):
    out = []
    for ln in text.split("\n"):
        st = ln.strip()
        if st == name + ":":
            out.append(ln)
            out.append("    s_memrealtime s[96:97]")
            out.append("    s_memtime s[98:99]")
            out.append("    v_readfirstlane_b32 s100, v0")
            out.append("    s_mov_b32 s101, s2")
        elif st == "s_endpgm":
            out.append("    s_branch PROF_EXIT_%d" % idx)
        elif st.startswith(";STAMP"):
            i = int(st.split()[1])
            out.append("    s_memrealtime s[%d:%d]" % (72+2*i, 73+2*i))
        elif st.startswith(".section .rodata"):
            out.append("PROF_EXIT_%d:" % idx)
            out.append("    s_load_dwordx2 s[12:13], s[0:1], %d" % A_WS)
            out.append("    s_waitcnt vmcnt(0) lgkmcnt(0)")
            out.append("    s_memrealtime s[10:11]")
            out.append("    s_memtime s[6:7]")
            out.append("    s_waitcnt lgkmcnt(0)")
            out.append("    s_sub_u32 s59, s6, s98")
            out.append("    s_mov_b64 exec, 1")
            out.append("    s_lshr_b32 s100, s100, 6")
            out.append("    s_lshl_b32 s101, s101, 3")
            out.append("    s_add_u32 s100, s100, s101")
            out.append("    s_lshl_b32 s100, s100, 6")
            out.append("    s_add_u32 s100, s100, %d" % (WS_PROF + idx*0x40000))
            out.append("    s_add_u32 s16, s12, s100")
            out.append("    s_addc_u32 s17, s13, 0")
            out.append("    s_mov_b32 s18, 64")
            out.append("    s_mov_b32 s19, 0x20000")
            out.append("    v_mov_b32 v0, s96")
            out.append("    v_mov_b32 v1, s10")
            out.append("    v_mov_b32 v2, 0")
            out.append("    buffer_store_dwordx2 v[0:1], v2, s[16:19], 0 offen")
            for i in range(12):
                out.append("    v_mov_b32 v0, s%d" % (72+2*i))
                out.append("    buffer_store_dword v0, v2, s[16:19], 0 offen offset:%d" % (8+4*i))
                out.append("    s_nop 1")
            out.append("    v_mov_b32 v0, s59")
            out.append("    buffer_store_dword v0, v2, s[16:19], 0 offen offset:56")
            out.append("    s_waitcnt vmcnt(0)")
            out.append("    s_endpgm")
            out.append(ln)
        else:
            out.append(ln)
    return "\n".join(out)

HEADER_COMMENTS = """; adaLN + H3 long-conv + FFN (generated by dev/gen2.py)
; Kernarg: q0 k8 v16 shift_k24 ssm_k32 ssm_D40 B_x48 w1 56 w2 64 c72 w_mod80 out88 dbg96 ws104
"""
BLK = {"prep_kernel":512, "conv_kernel":512, "gemm1_kernel":512, "gemm2_kernel":512}
def build(prof=False):
    global HS, HL
    _uid[0] = 0
    if FUSED:
        name = NAME + "_kernel"
        lds = max(PA_LDS, PB_LDS, PC_LDS, PD_LDS, LSYNC + 64, (W2S + 4*2*W2S_N*1024) if W2STAGE else 0)
        BLK[name] = 512
        s = HEADER_COMMENTS + f"; @launch grid=(256,1,1) block=(512,1,1) lds={lds}\n"
        s += '.amdgcn_target "amdgcn-amd-amdhsa--gfx950"\n.text\n'
        t = gen_fused(name)
        if prof: t = add_prof(t, name, 0)
        return s + t, [(name, 256, lds)]
    names = ["prep_kernel", "conv_kernel", "gemm1_kernel", "gemm2_kernel"]
    grids = [256, 256, 256, 256]
    ldss = [PA_LDS, PB_LDS, PC_LDS, PD_LDS]
    s = HEADER_COMMENTS
    for n, g, l in zip(names, grids, ldss):
        s += f"; @launch kernel={n} grid=({g},1,1) block=({BLK[n]},1,1) lds={l}\n"
    s += '.amdgcn_target "amdgcn-amd-amdhsa--gfx950"\n.text\n'
    parts = [gen_kernel(names[0], phase_a, "PA", 144, first=True), gen_kernel(names[1], phase_b, "PB", 248),
             gen_kernel(names[2], phase_c, "PC", 256), gen_kernel(names[3], phase_d, "PD", 240, last=True)]
    if prof: parts = [add_prof(p, n, i) for i, (p, n) in enumerate(zip(parts, names))]
    s += "".join(parts)
    return s, list(zip(names, grids, ldss))

if __name__ == "__main__":
    s, _ = build()
    out = sys.argv[1] if len(sys.argv) > 1 else f"cdna_kernels/{NAME}.s"
    open(out, "w").write(s)
    print("wrote", out, len(s), "bytes")
```

```python
import importlib, gen5 as gen
def kern(name, body, vg=32):
    k = gen.K(); gen.header(k, name); k(body); k("s_endpgm")
    return k.text() + gen.kd(name, vg)
def variant(fname, pre, post, kernels):
    importlib.reload(gen)
    s, l = gen.build()
    name, g, lds = l[0]
    lines = s.split("\n")
    idx = [i for i,x in enumerate(lines) if x.startswith("; @launch")][0]
    lines[idx:idx+1] = pre + [f"; @launch kernel={name} grid=(256,1,1) block=(512,1,1) lds={lds}"] + post
    open(f"cdna_kernels/{fname}.s","w").write("\n".join(lines) + kernels)
empty = kern("empty_kernel", "")
E1 = "; @launch kernel=empty_kernel grid=(1,1,1) block=(64,1,1) lds=0"
E256 = "; @launch kernel=empty_kernel grid=(256,1,1) block=(64,1,1) lds=0"
variant("q_list", [], [], "")
variant("q_pre1", [E1], [], empty)
variant("q_post1", [], [E1], empty)
variant("q_pre256", [E256], [], empty)
```
